```python
import torch

def _softmax(x, axis=-1):
    return torch.softmax(x, dim=axis)
def _gelu(x):
    return torch.nn.functional.gelu(x, approximate="tanh")
def _silu(x):
    return torch.nn.functional.silu(x)
def _sigmoid(x):
    return torch.sigmoid(x)
def _layernorm(x, axis=-1, eps=1e-5):
    m = x.mean(dim=axis, keepdim=True)
    v = x.var(dim=axis, keepdim=True, unbiased=False)
    return (x - m) / torch.sqrt(v + eps)
def _scatter_add(tgt, idx, src, axis=0):
    return tgt.clone().index_add_(axis, idx, src)
def _segment_sum(src, seg, n):
    out = torch.zeros((n,) + src.shape[1:], dtype=src.dtype)
    return out.index_add_(0, seg, src)
def _pad(x, pw):
    flat = tuple(v for pair in reversed(pw) for v in pair)
    return torch.nn.functional.pad(x, flat)

kernel_name = 'standalone__detection_seg_fpn_lateral__vision'

def setup_inputs():

    _w = (lambda a: (lambda t: t.to(torch.bfloat16) if t.is_floating_point() else t)(torch.as_tensor(a)))
    H = W = (224 // 2) * 2
    C = 96
    k = 3
    return {
        "c_fine": _w((lambda *s: torch.randn(*s, dtype=torch.bfloat16) * 0.05)(1, H, W, C)),
        "p_coarse": _w((lambda *s: torch.randn(*s, dtype=torch.bfloat16) * 0.05)(1, H // 2, W // 2, C)),
        "w_lat": _w((lambda *s: torch.randn(*s, dtype=torch.bfloat16) * 0.05)(C, C)),
        "w_out": _w((lambda *s: torch.randn(*s, dtype=torch.bfloat16) * 0.05)(k, k, C, C)),
    }

def reference(c_fine, p_coarse, w_lat, w_out):
    B, H, W, C = c_fine.shape
    k = 3
    lat = torch.einsum("bhwc,cd->bhwd", c_fine, w_lat)
    up = (lambda x, n, axis: torch.repeat_interleave(x, n, dim=axis))((lambda x, n, axis: torch.repeat_interleave(x, n, dim=axis))(p_coarse, 2, axis=1), 2, axis=2)
    m = lat + up
    pad = k // 2
    mp = _pad(m, ((0, 0), (pad, pad), (pad, pad), (0, 0)))
    o = None
    for di in range(k):
        for dj in range(k):
            t = torch.einsum("bhwc,cd->bhwd", mp[:, di:di + H, dj:dj + W, :], w_out[di, dj])
            o = t if o is None else o + t
    return o
```

```python
def R(kind, base, n=1):
    return [(kind, base + i) for i in range(n)]
def rs(kind, base, n=1):
    return f"{kind}{base}" if n == 1 else f"{kind}[{base}:{base+n-1}]"

class Emit:
    def __init__(self):
        self.lines = []
        self.slot = 0
        self.lgkm = []
        self.mfma_w = {}
        self.mfma_wt = {}
        self.mfma_c = {}
        self.valu_w = {}
        self.valu_sw = {}
        self.store_r = {}
        self.m0_w = -100
        self.nops = 0
        self.waits = 0
    def _out(self, text, states=1):
        self.lines.append("    " + text)
        self.slot += states
    def comment(self, t): self.lines.append("    ; " + t)
    def label(self, t): self.lines.append(t + ":")
    def _pad_to(self, need_slot):
        while self.slot < need_slot:
            n = min(16, need_slot - self.slot)
            self._out(f"s_nop {n-1}", n)
            self.nops += n
    def _lgkm_for(self, regs):
        regs = set(regs)
        last = -1
        for i, d in enumerate(self.lgkm):
            if d & regs: last = i
        if last >= 0:
            n = len(self.lgkm) - 1 - last
            self._out(f"s_waitcnt lgkmcnt({n})")
            self.waits += 1
            self.lgkm = self.lgkm[last+1:]
    def wait_lgkm0(self):
        self._out("s_waitcnt lgkmcnt(0)")
        self.lgkm = []
    def wait_vm(self, n):
        self._out(f"s_waitcnt vmcnt({n})")
    def _need_mfma_w(self, regs, dist):
        need = 0
        for r in regs:
            if r in self.mfma_w: need = max(need, self.mfma_w[r] + 1 + dist)
        return need
    def mfma(self, D, A, B, C):
        d = R(D[0], D[1], 4); a = R(A[0], A[1], 4); b = R(B[0], B[1], 4)
        c = R(C[0], C[1], 4) if C is not None else []
        self._lgkm_for(d + a + b + c)
        need = 0
        for r in a + b + c:
            if r in self.valu_w: need = max(need, self.valu_w[r] + 1 + 2)
        need = max(need, self._need_mfma_w(a + b, 8))
        for r in c:
            if r in self.mfma_w and self.mfma_wt[r] != C:
                need = max(need, self.mfma_w[r] + 1 + 6)
        self._pad_to(need)
        cs = rs(C[0], C[1], 4) if C is not None else "0"
        s = self.slot
        self._out(f"v_mfma_f32_16x16x32_bf16 {rs(D[0],D[1],4)}, {rs(A[0],A[1],4)}, {rs(B[0],B[1],4)}, {cs}")
        for r in d:
            self.mfma_w[r] = s; self.mfma_wt[r] = D
            self.valu_w.pop(r, None)
        for r in c: self.mfma_c[r] = s
    def valu(self, text, w=(), r=(), sw=(), sr=(), perm=False, rfl=False):
        w = list(w); r = list(r)
        self._lgkm_for(w + r)
        need = self._need_mfma_w(w + r, 8)
        for x in w:
            if x in self.mfma_c: need = max(need, self.mfma_c[x] + 1 + 3)
            if x in self.store_r: need = max(need, self.store_r[x] + 1 + 2)
        for x in sr:
            if x in self.valu_sw: need = max(need, self.valu_sw[x] + 1 + 2)
        if perm:
            for x in r:
                if x in self.valu_w: need = max(need, self.valu_w[x] + 1 + 2)
        if rfl:
            for x in r:
                if x in self.valu_w: need = max(need, self.valu_w[x] + 1 + 1)
        self._pad_to(need)
        s = self.slot
        self._out(text)
        for x in w:
            self.valu_w[x] = s; self.mfma_w.pop(x, None)
        for x in sw: self.valu_sw[x] = s
    def salu(self, text, sr=(), m0=False):
        need = 0
        for x in sr:
            if x in self.valu_sw: need = max(need, self.valu_sw[x] + 1 + 4)
        self._pad_to(need)
        s = self.slot
        self._out(text)
        if m0: self.m0_w = s
    def ds_read(self, text, dst, addr):
        dst = list(dst)
        self._lgkm_for(dst + list(addr))
        need = self._need_mfma_w(dst + list(addr), 8)
        for x in dst:
            if x in self.store_r: need = max(need, self.store_r[x] + 1 + 2)
            if x in self.mfma_c: need = max(need, self.mfma_c[x] + 1 + 3)
        self._pad_to(need)
        if len(self.lgkm) >= 15:
            self._out(f"s_waitcnt lgkmcnt(14)"); self.lgkm = self.lgkm[len(self.lgkm)-14:]
        self._out(text)
        for x in dst:
            self.mfma_w.pop(x, None); self.valu_w.pop(x, None)
        self.lgkm.append(set(dst))
    def ds_write(self, text, src):
        src = list(src)
        self._lgkm_for(src)
        self._pad_to(self._need_mfma_w(src, 8))
        if len(self.lgkm) >= 15:
            self._out(f"s_waitcnt lgkmcnt(14)"); self.lgkm = self.lgkm[len(self.lgkm)-14:]
        self._out(text)
        self.lgkm.append(set())
    def vmem(self, text, r=(), sr=(), wide_data=(), dma=False):
        r = list(r)
        self._lgkm_for(r)
        need = self._need_mfma_w(r, 8)
        for x in sr:
            if x in self.valu_sw: need = max(need, self.valu_sw[x] + 1 + 5)
        if dma: need = max(need, self.m0_w + 1 + 1)
        self._pad_to(need)
        s = self.slot
        self._out(text)
        for x in wide_data: self.store_r[x] = s
    def raw(self, text, states=1):
        self._out(text, states)
    def barrier(self):
        self._out("s_barrier")
    def region_begin(self):
        self._rb = getattr(self, "_rb", [])
        snaps = [dict(d) for d in (self.mfma_w, self.mfma_c, self.valu_w, self.valu_sw, self.store_r)]
        self._rb.append((self.slot, list(self.lgkm), snaps, dict(self.mfma_wt)))
    def region_end(self, drain=True):
        s0, lg0, snaps, wt0 = self._rb.pop()
        if drain and self.lgkm != lg0[len(lg0)-len(self.lgkm):]:
            self.wait_lgkm0()
        shift = self.slot - s0
        for d, sn in zip((self.mfma_w, self.mfma_c, self.valu_w, self.valu_sw, self.store_r), snaps):
            for k in list(d.keys()):
                if d[k] >= s0: d[k] -= shift
            for k, v in sn.items():
                if k not in d or d[k] < v: d[k] = v
        for k, v in wt0.items():
            if self.mfma_wt.get(k) != v: self.mfma_wt[k] = ("?", -1)
        if self.m0_w >= s0: self.m0_w -= shift
        self.slot = s0
        self.lgkm = lg0
    def wait_for(self, regs):
        self._lgkm_for(regs)
    def text(self):
        return "\n".join(self.lines) + "\n"
```

```python
import sys, argparse
from emit import *

ap = argparse.ArgumentParser()
ap.add_argument("--stamps", action="store_true")
ap.add_argument("--name", default="standalone__detection_seg_fpn_lateral__vision_kernel")
ap.add_argument("--mode", default="full")
args = ap.parse_args()

ROWB = 43008; CROWB = 21504
MB = 0; MP = 4096; S = 224
PB = 61440; PP = 2048
WB = 77824; WS = 18432
LDS = 151552
FINE_B = 9633792; COARSE_B = 2408448; WLAT_B = 18432; WOUT_B = 165888
INV = 0x40000000

SF, SP, SWL, SWO, SO = 20, 24, 28, 32, 36
sW, sX0, sY0, sNR, sPAR, sG, sH = 40, 41, 42, 43, 44, 45, 46
sT0, sT1, sT2, sT3 = 47, 48, 49, 50
sM = 52
sLB = 54
sROW0 = 55
sCROW0 = 56
sOROW = 57
sOSTEP = 58
sV0, sV14 = 59, 51
sSTAMP = 60
vLANE, vM = 1, 2
vROW = 3
vWE, vWO_ = 11, 14
vWL, vPL, vOUT = 17, 18, 19
vD = 20
vT = 23
vLAa, vLAp, vLBa, vLBp = 28, 29, 30, 31
vFR = 32
vACC = 64
vLA = 148
vLB = 112
WV = 184

e = Emit()
V = lambda n, k=1: R('v', n, k)
nstamp = [0]
def stamp(tag):
    if not args.stamps: return
    k = nstamp[0]; nstamp[0] += 1
    assert sSTAMP + 2*k + 1 < 102
    e.raw(f"s_memtime s[{sSTAMP+2*k}:{sSTAMP+2*k+1}]")

def wreg(j, dip, t):
    idx = (dip*3 + t)*4
    if j < 7: return ('a', 36*j + idx)
    return ('v', WV + 36*(j-7) + idx)
def wlreg(t, s): return ('v', WV + (t*3 + s)*4)
def acc(o, t): return ('v', vACC + 12*o + 4*t)

lab = [0]
def newlabel(p="L"):
    lab[0] += 1; return f"{p}_{lab[0]}"

class Region:
    def __init__(self, cmp, drain=True): self.cmp = cmp; self.drain = drain
    def __enter__(self):
        self.l = newlabel("Lskip")
        e.salu(self.cmp)
        e.raw(f"s_cbranch_scc0 {self.l}")
        e.region_begin()
    def __exit__(self, *a):
        e.region_end(self.drain)
        e.label(self.l)

hdr = open("standalone__detection_seg_fpn_lateral__vision.s.ref").read().split("\n")
out = []
for l in hdr:
    if l.startswith("; @launch"): break
    out.append(l)
out.append(f"; @launch grid=(256,1,1) block=(256,1,1) lds={LDS}")
out.append('.amdgcn_target "amdgcn-amd-amdhsa--gfx950"')
out.append(".text")
out.append(f".globl {args.name}")
out.append(".p2align 8")
out.append(f".type {args.name},@function")
out.append(f"{args.name}:")

stamp("start")
e.salu("s_cmp_ge_u32 s2, 256")
e.raw("s_cbranch_scc1 L_end")
e.raw("s_load_dwordx8 s[4:11], s[0:1], 0")
e.raw("s_load_dwordx2 s[12:13], s[0:1], 32")
if args.stamps: e.raw("s_load_dwordx2 s[16:17], s[0:1], 48")
e.valu("v_lshrrev_b32 v23, 6, v0", w=V(23), r=V(0))
e.valu(f"v_and_b32 v{vLANE}, 63, v0", w=V(vLANE), r=V(0))
e.valu(f"v_readfirstlane_b32 s{sW}, v23", r=V(23), sw=[sW], rfl=True)
e.salu(f"s_and_b32 s{sT0}, s2, 7")
e.salu(f"s_lshl_b32 s{sT0}, s{sT0}, 5")
e.salu(f"s_lshr_b32 s{sT1}, s2, 3")
e.salu(f"s_add_u32 s{sT0}, s{sT0}, s{sT1}")
e.salu(f"s_cmp_ge_u32 s{sT0}, 252")
e.raw("s_cbranch_scc1 L_end")
e.salu(f"s_mul_i32 s{sT1}, s{sT0}, 3641")
e.salu(f"s_lshr_b32 s{sT1}, s{sT1}, 16")
e.salu(f"s_mul_i32 s{sT2}, s{sT1}, 18")
e.salu(f"s_sub_u32 s{sT2}, s{sT0}, s{sT2}")
e.salu(f"s_lshl_b32 s{sX0}, s{sT1}, 4")
e.salu(f"s_mul_i32 s{sT3}, s{sT2}, 815584")
e.salu(f"s_lshr_b32 s{sY0}, s{sT3}, 16")
e.salu(f"s_add_u32 s{sT3}, s{sT3}, 815584")
e.salu(f"s_lshr_b32 s{sT3}, s{sT3}, 16")
e.salu(f"s_sub_u32 s{sNR}, s{sT3}, s{sY0}")
e.salu(f"s_sub_u32 s{sT0}, s{sY0}, 1")
e.salu(f"s_and_b32 s{sPAR}, s{sT0}, 1")
e.salu(f"s_mul_i32 s{sROW0}, s{sT0}, {ROWB}")
e.salu(f"s_ashr_i32 s{sT0}, s{sT0}, 1")
e.salu(f"s_mul_i32 s{sCROW0}, s{sT0}, {CROWB}")
e.salu(f"s_lshr_b32 s{sG}, s{sW}, 1", sr=[sW])
e.salu(f"s_and_b32 s{sH}, s{sW}, 1")
e.valu(f"v_mov_b32 v29, {INV:#x}", w=V(29))

e.salu(f"s_cmp_lt_u32 s{sW}, 2")
e.raw("s_cbranch_scc0 L_wload")
e.region_begin()
e.salu(f"s_lshl_b32 s{sT0}, s{sW}, 7")
e.salu(f"s_sub_u32 s{sT1}, s{sX0}, 1")
for k in range(2):
    if k == 0: e.valu(f"v_add_u32 v24, s{sT0}, v{vLANE}", w=V(24), r=V(vLANE))
    else:      e.valu(f"v_add_u32 v24, 64, v24", w=V(24), r=V(24))
    e.valu("v_mul_u32_u24 v25, 4682, v24", w=V(25), r=V(24))
    e.valu("v_lshrrev_b32 v25, 16, v25", w=V(25), r=V(25))
    e.valu("v_mul_u32_u24 v26, 14, v25", w=V(26), r=V(25))
    e.valu("v_sub_u32 v26, v24, v26", w=V(26), r=V(24)+V(26))
    e.valu(f"v_add_u32 v27, s{sT1}, v25", w=V(27), r=V(25))
    e.valu("v_mul_u32_u24 v28, 192, v27", w=V(28), r=V(27))
    e.valu("v_lshl_add_u32 v28, v26, 4, v28", w=V(28), r=V(26)+V(28))
    e.valu("v_cmp_gt_u32 vcc, 224, v27", r=V(27), sw=["vcc"])
    e.valu(f"v_cmp_gt_u32 s[{sM}:{sM+1}], 12, v26", r=V(26), sw=[sM])
    e.salu(f"s_and_b64 vcc, vcc, s[{sM}:{sM+1}]", sr=["vcc", sM])
    e.valu(f"v_cmp_gt_u32 s[{sM}:{sM+1}], 18, v25", r=V(25), sw=[sM])
    e.salu(f"s_and_b64 vcc, vcc, s[{sM}:{sM+1}]", sr=["vcc", sM])
    e.raw("s_nop 1", 2)
    e.valu(f"v_cndmask_b32 v{vD+k}, v29, v28, vcc", w=V(vD+k), r=V(29)+V(28))
e.salu(f"s_lshl_b32 s{sT0}, s{sW}, 6")
e.salu(f"s_lshr_b32 s{sT1}, s{sX0}, 1")
e.salu(f"s_sub_u32 s{sT1}, s{sT1}, 1")
e.valu(f"v_add_u32 v24, s{sT0}, v{vLANE}", w=V(24), r=V(vLANE))
e.valu("v_mul_u32_u24 v25, 5462, v24", w=V(25), r=V(24))
e.valu("v_lshrrev_b32 v25, 16, v25", w=V(25), r=V(25))
e.valu("v_mul_u32_u24 v26, 12, v25", w=V(26), r=V(25))
e.valu("v_sub_u32 v26, v24, v26", w=V(26), r=V(24)+V(26))
e.valu(f"v_add_u32 v27, s{sT1}, v25", w=V(27), r=V(25))
e.valu("v_mul_u32_u24 v28, 192, v27", w=V(28), r=V(27))
e.valu("v_lshl_add_u32 v28, v26, 4, v28", w=V(28), r=V(26)+V(28))
e.valu("v_cmp_gt_u32 vcc, 112, v27", r=V(27), sw=["vcc"])
e.valu(f"v_cmp_gt_u32 s[{sM}:{sM+1}], 10, v25", r=V(25), sw=[sM])
e.salu(f"s_and_b64 vcc, vcc, s[{sM}:{sM+1}]", sr=["vcc", sM])
e.raw("s_nop 1", 2)
e.valu(f"v_cndmask_b32 v{vD+2}, v29, v28, vcc", w=V(vD+2), r=V(29)+V(28))
e.salu(f"s_lshl_b32 s{sLB}, s{sW}, 11")
e.salu(f"s_lshl_b32 s{sT3}, s{sW}, 10")
e.raw("s_waitcnt lgkmcnt(0)")
for (srd, p, nb) in ((SF, 4, FINE_B), (SP, 6, COARSE_B)):
    e.salu(f"s_mov_b32 s{srd}, s{p}")
    e.salu(f"s_mov_b32 s{srd+1}, s{p+1}")
    e.salu(f"s_mov_b32 s{srd+3}, 0x20000")
def fine_row(r):
    if r == 0:
        e.salu(f"s_cmp_eq_u32 s{sY0}, 0")
        e.salu(f"s_cselect_b32 s{SF+2}, 0, {FINE_B}")
        e.salu(f"s_max_i32 s{sT0}, s{sROW0}, 0")
    else:
        if r == 14:
            e.salu(f"s_cmp_eq_u32 s{sY0}, 211")
            e.salu(f"s_cselect_b32 s{SF+2}, 0, {FINE_B}")
        e.salu(f"s_add_u32 s{sT0}, s{sROW0}, {r*ROWB}")
    for k in range(2):
        e.salu(f"s_add_u32 m0, s{sLB}, {MB + r*MP + k*1024}", m0=True)
        e.vmem(f"buffer_load_dwordx4 v{vD+k}, s[{SF}:{SF+3}], s{sT0} offen lds", r=V(vD+k), dma=True)
    if r in (0, 14):
        e.salu(f"s_mov_b32 s{SF+2}, {FINE_B}")
def coarse_row(cr):
    if cr == 0:
        e.salu(f"s_cmp_eq_u32 s{sY0}, 0")
        e.salu(f"s_cselect_b32 s{SP+2}, 0, {COARSE_B}")
        e.salu(f"s_max_i32 s{sT0}, s{sCROW0}, 0")
    else:
        if cr == 7:
            e.salu(f"s_cmp_eq_u32 s{sY0}, 211")
            e.salu(f"s_cselect_b32 s{SP+2}, 0, {COARSE_B}")
        e.salu(f"s_add_u32 s{sT0}, s{sCROW0}, {cr*CROWB}")
    e.salu(f"s_add_u32 m0, s{sT3}, {PB + cr*PP}", m0=True)
    e.vmem(f"buffer_load_dwordx4 v{vD+2}, s[{SP}:{SP+3}], s{sT0} offen lds", r=V(vD+2), dma=True)
    if cr in (0, 7):
        e.salu(f"s_mov_b32 s{SP+2}, {COARSE_B}")
stamp("dma-issue-begin")
for (a, b, c, d) in ((0, 14, 0, 7), (1, 13, 1, 6), (2, 12, 2, 5)):
    fine_row(a); fine_row(b); coarse_row(c); coarse_row(d)
fine_row(3); fine_row(11)
coarse_row(3); coarse_row(4)
for r in (4, 10, 5, 9, 6, 8, 7): fine_row(r)
e.raw("s_branch L_setup")
e.region_end()
e.label("L_wload")
e.region_begin()
e.salu(f"s_mul_i32 s{sT0}, s{sH}, 3072")
for p in range(3):
    if p == 0: e.valu(f"v_mov_b32 v24, v{vLANE}", w=V(24), r=V(vLANE))
    else:      e.valu("v_add_u32 v24, 64, v24", w=V(24), r=V(24))
    e.valu("v_mul_u32_u24 v25, 5462, v24", w=V(25), r=V(24))
    e.valu("v_lshrrev_b32 v25, 16, v25", w=V(25), r=V(25))
    e.valu("v_mul_u32_u24 v26, 12, v25", w=V(26), r=V(25))
    e.valu("v_sub_u32 v26, v24, v26", w=V(26), r=V(24)+V(26))
    e.valu("v_lshrrev_b32 v27, 3, v25", w=V(27), r=V(25))
    e.valu("v_lshlrev_b32 v27, 1, v27", w=V(27), r=V(27))
    e.valu("v_xor_b32 v26, v26, v27", w=V(26), r=V(26)+V(27))
    e.valu("v_mul_u32_u24 v28, 192, v25", w=V(28), r=V(25))
    e.valu("v_lshl_add_u32 v28, v26, 4, v28", w=V(28), r=V(26)+V(28))
    e.valu(f"v_add_u32 v{vD+p}, s{sT0}, v28", w=V(vD+p), r=V(28))
e.salu(f"s_add_u32 s{sLB}, s{sT0}, {WB}")
e.raw("s_waitcnt lgkmcnt(0)")
for (srd, p, nb) in ((SWL, 8, WLAT_B), (SWO, 10, WOUT_B)):
    e.salu(f"s_mov_b32 s{srd}, s{p}")
    e.salu(f"s_mov_b32 s{srd+1}, s{p+1}")
    e.salu(f"s_mov_b32 s{srd+2}, {nb}")
    e.salu(f"s_mov_b32 s{srd+3}, 0x20000")
def chunk_dma_ops(j):
    slot = (j + 1) % 4
    ops = []
    for blk in range(3):
        for p in range(3):
            def f(blk=blk, p=p):
                if p == 0:
                    so = blk*6144 if j < 0 else j*6144 + blk*55296
                    e.salu(f"s_mov_b32 s{sT1}, {so}")
                e.salu(f"s_add_u32 m0, s{sLB}, {slot*WS + blk*6144 + p*1024}", m0=True)
                srd = SWL if j < 0 else SWO
                e.vmem(f"buffer_load_dwordx4 v{vD+p}, s[{srd}:{srd+3}], s{sT1} offen lds", r=V(vD+p), dma=True)
            ops.append(f)
    return ops
if args.stamps:
    nstamp[0] -= 1; stamp("dma-issue-begin")
for j in (-1, 0, 1, 2):
    for f in chunk_dma_ops(j): f()
e.region_end()
e.label("L_setup")
stamp("dma-issue-end")

e.salu(f"s_mov_b32 s{SO}, s12")
e.salu(f"s_mov_b32 s{SO+1}, s13")
e.salu(f"s_mov_b32 s{SO+2}, {FINE_B}")
e.salu(f"s_mov_b32 s{SO+3}, 0x20000")
e.salu(f"s_mov_b32 s{SWO}, s10")
e.salu(f"s_mov_b32 s{SWO+1}, s11")
e.salu(f"s_mov_b32 s{SWO+2}, {WOUT_B}")
e.salu(f"s_mov_b32 s{SWO+3}, 0x20000")
e.valu(f"v_and_b32 v23, 15, v{vLANE}", w=V(23), r=V(vLANE))
e.valu(f"v_lshrrev_b32 v24, 4, v{vLANE}", w=V(24), r=V(vLANE))
e.valu(f"v_mul_u32_u24 v{vM}, {S}, v23", w=V(vM), r=V(23))
e.valu(f"v_lshl_add_u32 v{vM}, v24, 4, v{vM}", w=V(vM), r=V(24)+V(vM))
e.salu(f"s_mul_i32 s{sT0}, s{sG}, {14*MP}")
e.salu(f"s_mul_i32 s{sT1}, s{sG}, {-2*MP & 0xffffffff}")
e.salu(f"s_add_u32 s{sT1}, s{sT1}, {MP}")
e.valu(f"v_add_u32 v{vROW}, s{sT0}, v{vM}", w=V(vROW), r=V(vM))
for k in range(1, 8):
    e.valu(f"v_add_u32 v{vROW+k}, s{sT1}, v{vROW+k-1}", w=V(vROW+k), r=V(vROW+k-1))
e.valu("v_lshrrev_b32 v25, 2, v23", w=V(25), r=V(23))
e.valu("v_lshl_add_u32 v25, v24, 3, v25", w=V(25), r=V(24)+V(25))
e.valu("v_mul_u32_u24 v25, 192, v25", w=V(25), r=V(25))
e.valu(f"v_add_u32 v25, {WB}, v25", w=V(25), r=V(25))
e.valu(f"v_and_b32 v26, 3, v{vLANE}", w=V(26), r=V(vLANE))
e.valu("v_and_b32 v27, 1, v24", w=V(27), r=V(24))
e.valu("v_lshlrev_b32 v28, 1, v27", w=V(28), r=V(27))
e.valu("v_xor_b32 v28, v26, v28", w=V(28), r=V(26)+V(28))
e.valu(f"v_lshl_add_u32 v{vWL}, v28, 4, v25", w=V(vWL), r=V(28)+V(25))
e.valu("v_lshl_add_u32 v25, v26, 3, v25", w=V(25), r=V(26)+V(25))
e.salu(f"s_mul_i32 s{sT0}, s{sH}, 96")
e.valu(f"v_add_u32 v25, s{sT0}, v25", w=V(25), r=V(25))
e.salu(f"s_cmp_eq_u32 s{sH}, 0")
e.salu(f"s_cselect_b32 s{sT0}, 32, -32")
e.valu(f"v_mul_i32_i24 v27, s{sT0}, v27", w=V(27), r=V(27))
e.valu("v_add_u32 v28, v25, v27", w=V(28), r=V(25)+V(27))
e.valu("v_sub_u32 v25, v25, v27", w=V(25), r=V(25)+V(27))
e.salu(f"s_mul_i32 s{sT0}, s{sG}, 12288")
e.salu(f"s_sub_u32 s{sT1}, 12288, s{sT0}")
e.valu(f"v_add_u32 v{vWE}, s{sT0}, v28", w=V(vWE), r=V(28))
e.valu(f"v_add_u32 v{vWE+1}, 6144, v28", w=V(vWE+1), r=V(28))
e.valu(f"v_add_u32 v{vWE+2}, s{sT1}, v28", w=V(vWE+2), r=V(28))
e.valu(f"v_add_u32 v{vWO_}, s{sT0}, v25", w=V(vWO_), r=V(25))
e.valu(f"v_add_u32 v{vWO_+1}, 6144, v25", w=V(vWO_+1), r=V(25))
e.valu(f"v_add_u32 v{vWO_+2}, s{sT1}, v25", w=V(vWO_+2), r=V(25))
e.valu("v_add_u32 v25, 1, v23", w=V(25), r=V(23))
e.valu("v_lshrrev_b32 v25, 1, v25", w=V(25), r=V(25))
e.valu("v_mul_u32_u24 v25, 192, v25", w=V(25), r=V(25))
e.valu(f"v_lshl_add_u32 v25, v24, 4, v25", w=V(25), r=V(24)+V(25))
e.valu(f"v_add_u32 v{vPL}, {PB}, v25", w=V(vPL), r=V(25))
e.valu(f"v_add_u32 v25, s{sX0}, v23", w=V(25), r=V(23))
e.valu("v_mul_u32_u24 v25, 192, v25", w=V(25), r=V(25))
e.valu("v_lshl_add_u32 v25, v24, 3, v25", w=V(25), r=V(24)+V(25))
e.salu(f"s_mul_i32 s{sT0}, s{sH}, 96")
e.valu(f"v_add_u32 v{vOUT}, s{sT0}, v25", w=V(vOUT), r=V(25))
e.salu(f"s_mul_i32 s{sT0}, s{sG}, 12")
e.salu(f"s_add_u32 s{sT0}, s{sT0}, s{sY0}")
e.salu(f"s_mul_i32 s{sOROW}, s{sT0}, {ROWB}")
e.salu(f"s_mul_i32 s{sOSTEP}, s{sG}, {-2*ROWB & 0xffffffff}")
e.salu(f"s_add_u32 s{sOSTEP}, s{sOSTEP}, {ROWB}")

def row_desc(va, vp, rowadd):
    e.salu(f"s_add_u32 s{sT0}, s{sW}, {rowadd}")
    e.salu(f"s_lshl_b32 s{sT1}, s{sT0}, 12")
    e.valu(f"v_add_u32 v{va}, s{sT1}, v{vM}", w=V(va), r=V(vM))
    e.salu(f"s_add_u32 s{sT0}, s{sT0}, s{sPAR}")
    e.salu(f"s_lshr_b32 s{sT0}, s{sT0}, 1")
    e.salu(f"s_lshl_b32 s{sT0}, s{sT0}, 11")
    e.valu(f"v_add_u32 v{vp}, s{sT0}, v{vPL}", w=V(vp), r=V(vPL))
def edge_desc(va, vp, which):
    e.valu(f"v_and_b32 v23, 15, v{vLANE}", w=V(23), r=V(vLANE))
    e.valu(f"v_lshrrev_b32 v24, 4, v{vLANE}", w=V(24), r=V(vLANE))
    e.valu("v_lshrrev_b32 v25, 1, v23", w=V(25), r=V(23))
    if which == 0:
        e.valu("v_lshrrev_b32 v26, 2, v25", w=V(26), r=V(25))
        e.valu("v_mad_u32_u24 v25, v26, 7, v25", w=V(25), r=V(26)+V(25))
    else:
        e.valu("v_add_u32 v25, 4, v25", w=V(25), r=V(25))
        e.valu("v_min_u32 v25, 10, v25", w=V(25), r=V(25))
    e.valu("v_and_b32 v23, 1, v23", w=V(23), r=V(23))
    e.valu(f"v_mul_u32_u24 v26, {S}, v23", w=V(26), r=V(23))
    e.valu("v_lshl_add_u32 v26, v25, 12, v26", w=V(26), r=V(25)+V(26))
    e.valu("v_lshl_add_u32 v26, v24, 4, v26", w=V(26), r=V(24)+V(26))
    e.valu(f"v_add_u32 v{va}, {MB + 16*S}, v26", w=V(va), r=V(26))
    e.valu(f"v_add_u32 v25, s{sPAR}, v25", w=V(25), r=V(25))
    e.valu("v_lshrrev_b32 v25, 1, v25", w=V(25), r=V(25))
    e.valu("v_mul_u32_u24 v26, 192, v23", w=V(26), r=V(23))
    e.valu("v_lshl_add_u32 v26, v25, 11, v26", w=V(26), r=V(25)+V(26))
    e.valu("v_lshl_add_u32 v26, v24, 4, v26", w=V(26), r=V(24)+V(26))
    e.valu(f"v_add_u32 v{vp}, {PB + 8*192}, v26", w=V(vp), r=V(26))

def role_wait(wn, inn):
    if wn is not None:
        with Region(f"s_cmp_ge_u32 s{sW}, 2"): e.wait_vm(wn)
    if inn is not None:
        with Region(f"s_cmp_lt_u32 s{sW}, 2"): e.wait_vm(inn)

def pull_ops(j):
    slot = (j + 1) % 4
    ops = []
    if j < 0:
        for s in range(3):
            for t in range(6):
                u, ee = t >> 1, t & 1
                for hh in range(2):
                    k, b = wlreg(t, s)
                    off = slot*WS + s*6144 + hh*768 + 64*u + 8*ee
                    def f(k=k, b=b, off=off, hh=hh):
                        e.ds_read(f"ds_read_b64_tr_b16 {rs(k, b+2*hh, 2)}, v{vWL} offset:{off}", R(k, b+2*hh, 2), V(vWL))
                    ops.append(f)
    else:
        for dip in range(3):
            for t in range(3):
                for hh in range(2):
                    k, b = wreg(j, dip, t)
                    va = (vWE if t % 2 == 0 else vWO_) + dip
                    off = slot*WS + hh*768 + 32*t
                    def f(k=k, b=b, off=off, hh=hh, va=va):
                        e.ds_read(f"ds_read_b64_tr_b16 {rs(k, b+2*hh, 2)}, v{va} offset:{off}", R(k, b+2*hh, 2), V(va))
                    ops.append(f)
    return ops
def pull_last_regs(j):
    if j < 0: k, b = wlreg(5, 2)
    else: k, b = wreg(j, 2, 2)
    return R(k, b+2, 2)

def issue_chunk(j):
    with Region(f"s_cmp_ge_u32 s{sW}, 2"):
        for f in chunk_dma_ops(j): f()

def interleave(main, fill, per=2, start=0):
    fi = 0
    for n, m in enumerate(main):
        m()
        if n >= start:
            for _ in range(per):
                if fi < len(fill): fill[fi](); fi += 1
    while fi < len(fill): fill[fi](); fi += 1

def lat_reads(base, va, vp):
    X = base; A = base + 12
    ops = []
    for u in range(3):
        def f(u=u): e.ds_read(f"ds_read_b128 v[{A+8*u+4}:{A+8*u+7}], v{vp} offset:{64*u}", V(A+8*u+4, 4), V(vp))
        ops.append(f)
    for s in range(3):
        def f(s=s): e.ds_read(f"ds_read_b128 v[{X+4*s}:{X+4*s+3}], v{va} offset:{64*s}", V(X+4*s, 4), V(va))
        ops.append(f)
    return ops
def lat_unpack(base):
    A = base + 12
    ops = []
    for u in range(3):
        a = A + 8*u
        seq = [(a+0, a+4, 0), (a+1, a+4, 1), (a+2, a+5, 0), (a+3, a+5, 1),
               (a+4, a+6, 0), (a+5, a+6, 1), (a+6, a+7, 0), (a+7, a+7, 1)]
        for (d, s_, hi) in seq:
            def f(d=d, s_=s_, hi=hi):
                if hi: e.valu(f"v_and_b32 v{d}, 0xffff0000, v{s_}", w=V(d), r=V(s_))
                else:  e.valu(f"v_lshlrev_b32 v{d}, 16, v{s_}", w=V(d), r=V(s_))
            ops.append(f)
    return ops
def lat_mfma(base):
    X = base; A = base + 12
    ops = []
    for s in range(3):
        for t in range(6):
            def f(s=s, t=t): e.mfma(('v', A+4*t), wlreg(t, s), ('v', X+4*s), ('v', A+4*t))
            ops.append(f)
    return ops
def lat_store(base, va):
    X = base; A = base + 12
    ops = []
    for u in range(3):
        for d in range(4):
            def f(u=u, d=d):
                e.valu(f"v_cvt_pk_bf16_f32 v{X+4*u+d}, v{A+8*u+2*d}, v{A+8*u+2*d+1}", w=V(X+4*u+d), r=V(A+8*u+2*d, 2))
            ops.append(f)
        def f(u=u): e.ds_write(f"ds_write_b128 v{va}, v[{X+4*u}:{X+4*u+3}] offset:{64*u}", V(va) + V(X+4*u, 4))
        ops.append(f)
    return ops
def lateral_pair(extra_fill=()):
    for f in lat_reads(vLA, vLAa, vLAp): f()
    for f in lat_reads(vLB, vLBa, vLBp): f()
    for f in lat_unpack(vLA): f()
    interleave(lat_mfma(vLA), lat_unpack(vLB) + list(extra_fill[:12]), per=2)
    interleave(lat_mfma(vLB), list(extra_fill[12:]) + lat_store(vLA, vLAa), per=2, start=0)
    for f in lat_store(vLB, vLBa): f()
def lateral_single():
    for f in lat_reads(vLA, vLAa, vLAp): f()
    for f in lat_unpack(vLA): f()
    for f in lat_mfma(vLA): f()
    for f in lat_store(vLA, vLAa): f()

inited = set()
def conv_mfma(j, rp, dip, t, fr):
    o = rp - dip
    def f():
        first = (o, t) not in inited
        inited.add((o, t))
        e.mfma(acc(o, t), wreg(j, dip, t), ('v', fr), None if first else acc(o, t))
    return f
def frag_read(j, rp, fr):
    dj, s = divmod(j, 3)
    def f():
        e.ds_read(f"ds_read_b128 v[{fr}:{fr+3}], v{vROW+rp} offset:{dj*S + 64*s}", V(fr, 4), V(vROW+rp))
    return f
def epilogue_ops(o):
    ops = []
    a = vACC + 12*o
    for t in range(3):
        for d in range(2):
            def f(t=t, d=d):
                e.valu(f"v_cvt_pk_bf16_f32 v{a+4*t+d}, v{a+4*t+2*d}, v{a+4*t+2*d+1}", w=V(a+4*t+d), r=V(a+4*t+2*d, 2))
            ops.append(f)
    def st():
        def body():
            for t in range(3):
                e.vmem(f"buffer_store_dwordx2 v[{a+4*t}:{a+4*t+1}], v{vOUT}, s[{SO}:{SO+3}], s{sOROW} offen offset:{32*t}",
                       r=V(a+4*t, 2) + V(vOUT))
        if o == 0:
            e.salu(f"s_sub_u32 s{sT0}, s{sNR}, s{sG}")
            with Region(f"s_cmp_ge_u32 s{sT0}, 12"): body()
        else: body()
        e.salu(f"s_add_u32 s{sOROW}, s{sOROW}, s{sOSTEP}")
    ops.append(st)
    return ops

RA = 4
row_desc(vLAa, vLAp, 0)
row_desc(vLBa, vLBp, 11)
role_wait(27, None); stamp("wlat landed"); e.barrier()
for f in pull_ops(-1): f()
role_wait(18, None); stamp("c0 landed"); e.wait_for(pull_last_regs(-1)); e.barrier()
issue_chunk(3)
for f in pull_ops(0): f()
role_wait(18, 16); stamp("c1/b1 landed"); e.wait_for(pull_last_regs(0)); e.barrier()
issue_chunk(4)
lateral_pair(pull_ops(1))
with Region(f"s_cmp_eq_u32 s{sW}, 0"):
    edge_desc(vLAa, vLAp, 0)
    lateral_single()
row_desc(vLAa, vLAp, 4)
row_desc(vLBa, vLBp, 8)
with Region(f"s_cmp_eq_u32 s{sW}, 3"):
    edge_desc(vLBa, vLBp, 1)
role_wait(18, None); e.wait_lgkm0(); stamp("lat1 done/c2 landed"); e.barrier()

def frbuf(j, rp): return vFR + 16*(j % 2) + 4*rp
for rp in range(RA): frag_read(0, rp, frbuf(0, rp))()
for j in range(9):
    if j <= 3: issue_chunk(j + 5)
    main = []
    for rp in range(RA):
        for dip in range(3):
            if rp - dip < 0: continue
            for t in range(3): main.append(conv_mfma(j, rp, dip, t, frbuf(j, rp)))
    fill = []
    if j + 2 <= 8: fill += pull_ops(j + 2)
    if j + 1 <= 8: fill += [frag_read(j+1, rp, frbuf(j+1, rp)) for rp in range(RA)]
    interleave(main, fill, per=1)
    if j == 2:
        stamp("step2 mfma done")
        lateral_pair()
        stamp("lat2 done")
    if j + 2 <= 8 - 1 + 0 or j + 3 <= 8:
        pass
    if j + 3 <= 8:
        wn = 18 if j + 3 <= 6 else (9 if j + 3 == 7 else 0)
        inn = 0 if j == 1 else None
        role_wait(wn, inn)
        if j == 2: e.wait_lgkm0()
        else: e.wait_for(pull_last_regs(j + 2))
        stamp(f"step{j} end"); e.barrier()
stamp("phaseA end")

pend = epilogue_ops(0) + epilogue_ops(1)
seq = [(rp, j) for rp in (4, 5, 6) for j in range(9)]
NB = 8
def fb(n): return vFR + 4*(n % NB)
PF = 3
for n in range(PF): frag_read(seq[n][1], seq[n][0], fb(n))()
for n, (rp, j) in enumerate(seq):
    main = [conv_mfma(j, rp, dip, t, fb(n)) for dip in (2, 1, 0) for t in range(3)]
    fill = []
    if n + PF < len(seq): fill.append(frag_read(seq[n+PF][1], seq[n+PF][0], fb(n+PF)))
    take = pend[:8]; pend = pend[8:]
    interleave(main, fill + take, per=1, start=1)
    if j == 8: pend += epilogue_ops(rp - 2)
stamp("rows456 done")
JG = {0: [0, 1, 2, 3], 1: [4, 5, 6, 7, 8]}
for g in (0, 1):
    with Region(f"s_cmp_eq_u32 s{sG}, {g}"):
        for n, j in enumerate(JG[g]): frag_read(j, 7, fb(n))()
        for n, j in enumerate(JG[g]):
            for t in range(3): conv_mfma(j, 7, 1, t, fb(n))()
        if g == 1:
            e.salu(f"s_mul_i32 s{sT0}, s{sH}, 3072")
            e.valu(f"v_lshlrev_b32 v23, 4, v{vLANE}", w=V(23), r=V(vLANE))
            e.valu(f"v_add_u32 v23, s{sT0}, v23", w=V(23), r=V(23))
            for t in range(3):
                a = vACC + 72 + 4*t
                e.ds_write(f"ds_write_b128 v23, v[{a}:{a+3}] offset:{PB + 1024*t}", V(23) + V(a, 4))
for n in range(PF): frag_read(n, 7, fb(n))()
for j in range(9):
    main = [conv_mfma(j, 7, 2, t, fb(j)) for t in range(3)]
    fill = []
    if j + PF < 9: fill.append(frag_read(j+PF, 7, fb(j+PF)))
    take = pend[:3]; pend = pend[3:]
    interleave(main, fill + take, per=2, start=0)
for f in pend: f()
e.wait_lgkm0()
e.barrier()
for f in epilogue_ops(5): f()
with Region(f"s_cmp_eq_u32 s{sG}, 0"):
    e.salu(f"s_mul_i32 s{sT0}, s{sH}, 3072")
    e.valu(f"v_lshlrev_b32 v23, 4, v{vLANE}", w=V(23), r=V(vLANE))
    e.valu(f"v_add_u32 v23, s{sT0}, v23", w=V(23), r=V(23))
    for t in range(3):
        e.ds_read(f"ds_read_b128 v[{vFR+4*t}:{vFR+4*t+3}], v23 offset:{PB + 1024*t}", V(vFR+4*t, 4), V(23))
    for k in range(12):
        a = vACC + 72 + k
        e.valu(f"v_add_f32 v{a}, v{a}, v{vFR+k}", w=V(a), r=V(a) + V(vFR+k))
    for f in epilogue_ops(6): f()
stamp("end")
if args.stamps:
    e.raw("s_waitcnt vmcnt(0)")
    stamp("stores done")
    e.raw("s_waitcnt lgkmcnt(0)")
    e.salu(f"s_lshl_b32 s{sT0}, s2, 2")
    e.salu(f"s_add_u32 s{sT0}, s{sT0}, s{sW}")
    e.salu(f"s_lshl_b32 s{sT0}, s{sT0}, 8")
    e.salu("s_mov_b32 s20, s16"); e.salu("s_mov_b32 s21, s17"); e.salu("s_mov_b32 s22, 0x100000"); e.salu("s_mov_b32 s23, 0x20000")
    e.valu("v_mov_b32 v23, 0", w=V(23))
    e.raw("s_mov_b64 exec, 1")
    for k in range(nstamp[0]):
        e.valu(f"v_mov_b32 v24, s{sSTAMP+2*k}", w=V(24))
        e.valu(f"v_mov_b32 v25, s{sSTAMP+2*k+1}", w=V(25))
        e.vmem(f"buffer_store_dwordx2 v[24:25], v23, s[20:23], s{sT0} offen offset:{8*k}", r=V(23, 3))
        e.raw("s_nop 1")
e.label("L_end")
e.raw("s_endpgm")

out.append(e.text())
out.append('.section .rodata,"a"')
out.append(".p2align 6")
out.append(f".amdhsa_kernel {args.name}")
out.append("  .amdhsa_next_free_vgpr 512")
out.append("  .amdhsa_next_free_sgpr 102")
out.append("  .amdhsa_accum_offset 256")
out.append("  .amdhsa_group_segment_fixed_size 0")
out.append("  .amdhsa_kernarg_size 56")
out.append("  .amdhsa_user_sgpr_count 2")
out.append("  .amdhsa_user_sgpr_kernarg_segment_ptr 1")
out.append("  .amdhsa_system_sgpr_workgroup_id_x 1")
out.append(".end_amdhsa_kernel")
print("\n".join(out))
sys.stderr.write(f"nops={e.nops} waits={e.waits} stamps={nstamp[0]} lines={len(e.lines)}\n")
```

```python
import sys, argparse
from emit import *

ap = argparse.ArgumentParser()
ap.add_argument("--stamps", action="store_true")
ap.add_argument("--name", default="standalone__detection_seg_fpn_lateral__vision_kernel")
ap.add_argument("--mode", default="full")
ap.add_argument("--stflag", default="")
ap.add_argument("--nostore", action="store_true")
ap.add_argument("--dbg", action="store_true")
args = ap.parse_args()

ROWB = 43008; CROWB = 21504
MB = 0; MP = 4096; S = 224
PB = 61440; PP = 2048
WB = 77824; WS = 18432
LDS = 151552
FINE_B = 9633792; COARSE_B = 2408448; WLAT_B = 18432; WOUT_B = 165888
INV = 0x40000000

SF, SP, SWL, SWO, SO = 20, 24, 28, 32, 36
sW, sX0, sY0, sNR, sPAR, sG, sH = 40, 41, 42, 43, 44, 45, 46
sT0, sT1, sT2, sT3 = 47, 48, 49, 50
sM = 52
sLB = 54
sROW0 = 55
sCROW0 = 56
sOROW = 57
sOSTEP = 58
sV0, sV14 = 59, 51
sSTAMP = 60
vLANE, vM = 1, 2
vROW = 3
vWE, vWO_ = 11, 14
vWL, vPL, vOUT = 17, 18, 19
vD = 20
vT = 23
vLAa, vLAp, vLBa, vLBp = 28, 29, 30, 31
vFR = 32
vACC = 64
vLA = 148
vLB = 112
WV = 184

e = Emit()
V = lambda n, k=1: R('v', n, k)
nstamp = [0]
def stamp(tag):
    if not args.stamps: return
    k = nstamp[0]; nstamp[0] += 1
    assert sSTAMP + 2*k + 1 < 102
    e.raw(f"s_memtime s[{sSTAMP+2*k}:{sSTAMP+2*k+1}]")

def rtstamp(tag):
    if not args.stamps: return
    k = nstamp[0]; nstamp[0] += 1
    e.raw(f"s_memrealtime s[{sSTAMP+2*k}:{sSTAMP+2*k+1}]")

def wreg(j, dip, t):
    idx = (dip*3 + t)*4
    if j < 7: return ('a', 36*j + idx)
    return ('v', WV + 36*(j-7) + idx)
def wlreg(t, s): return ('v', WV + (t*3 + s)*4)
def acc(o, t): return ('v', vACC + 12*o + 4*t)

lab = [0]
def newlabel(p="L"):
    lab[0] += 1; return f"{p}_{lab[0]}"

class Region:
    def __init__(self, cmp, drain=True): self.cmp = cmp; self.drain = drain
    def __enter__(self):
        self.l = newlabel("Lskip")
        e.salu(self.cmp)
        e.raw(f"s_cbranch_scc0 {self.l}")
        e.region_begin()
    def __exit__(self, *a):
        e.region_end(self.drain)
        e.label(self.l)

hdr = open("standalone__detection_seg_fpn_lateral__vision.s.ref").read().split("\n")
out = []
for l in hdr:
    if l.startswith("; @launch"): break
    out.append(l)
out.append(f"; @launch grid=(256,1,1) block=(256,1,1) lds={LDS}")
out.append('.amdgcn_target "amdgcn-amd-amdhsa--gfx950"')
out.append(".text")
out.append(f".globl {args.name}")
out.append(".p2align 8")
out.append(f".type {args.name},@function")
out.append(f"{args.name}:")

stamp("start")
rtstamp("start")
if args.dbg:
    e.raw("s_memtime s[60:61]")
    e.raw("s_memrealtime s[62:63]")
    e.raw("s_load_dwordx2 s[16:17], s[0:1], 40")
e.salu("s_cmp_ge_u32 s2, 256")
e.raw("s_cbranch_scc1 L_end")
e.raw("s_load_dwordx8 s[4:11], s[0:1], 0")
e.raw("s_load_dwordx2 s[12:13], s[0:1], 32")
if args.stamps: e.raw("s_load_dwordx2 s[16:17], s[0:1], 48")
e.valu("v_lshrrev_b32 v23, 6, v0", w=V(23), r=V(0))
e.valu(f"v_and_b32 v{vLANE}, 63, v0", w=V(vLANE), r=V(0))
e.valu(f"v_readfirstlane_b32 s{sW}, v23", r=V(23), sw=[sW], rfl=True)
e.salu(f"s_and_b32 s{sT0}, s2, 7")
e.salu(f"s_lshl_b32 s{sT0}, s{sT0}, 5")
e.salu(f"s_lshr_b32 s{sT1}, s2, 3")
e.salu(f"s_add_u32 s{sT0}, s{sT0}, s{sT1}")
e.salu(f"s_cmp_ge_u32 s{sT0}, 252")
e.raw("s_cbranch_scc1 L_end")
e.salu(f"s_mul_i32 s{sT1}, s{sT0}, 3641")
e.salu(f"s_lshr_b32 s{sT1}, s{sT1}, 16")
e.salu(f"s_mul_i32 s{sT2}, s{sT1}, 18")
e.salu(f"s_sub_u32 s{sT2}, s{sT0}, s{sT2}")
e.salu(f"s_lshl_b32 s{sX0}, s{sT1}, 4")
e.salu(f"s_mul_i32 s{sT3}, s{sT2}, 815584")
e.salu(f"s_lshr_b32 s{sY0}, s{sT3}, 16")
e.salu(f"s_add_u32 s{sT3}, s{sT3}, 815584")
e.salu(f"s_lshr_b32 s{sT3}, s{sT3}, 16")
e.salu(f"s_sub_u32 s{sNR}, s{sT3}, s{sY0}")
e.salu(f"s_sub_u32 s{sT0}, s{sY0}, 1")
e.salu(f"s_and_b32 s{sPAR}, s{sT0}, 1")
e.salu(f"s_mul_i32 s{sROW0}, s{sT0}, {ROWB}")
e.salu(f"s_ashr_i32 s{sT0}, s{sT0}, 1")
e.salu(f"s_mul_i32 s{sCROW0}, s{sT0}, {CROWB}")
e.salu(f"s_lshr_b32 s{sG}, s{sW}, 1", sr=[sW])
e.salu(f"s_and_b32 s{sH}, s{sW}, 1")
e.valu(f"v_mov_b32 v29, {INV:#x}", w=V(29))

e.salu(f"s_cmp_lt_u32 s{sW}, 2")
e.raw("s_cbranch_scc0 L_wload")
e.region_begin()
e.salu(f"s_lshl_b32 s{sT0}, s{sW}, 7")
e.salu(f"s_sub_u32 s{sT1}, s{sX0}, 1")
for k in range(2):
    if k == 0: e.valu(f"v_add_u32 v24, s{sT0}, v{vLANE}", w=V(24), r=V(vLANE))
    else:      e.valu(f"v_add_u32 v24, 64, v24", w=V(24), r=V(24))
    e.valu("v_mul_u32_u24 v25, 4682, v24", w=V(25), r=V(24))
    e.valu("v_lshrrev_b32 v25, 16, v25", w=V(25), r=V(25))
    e.valu("v_mul_u32_u24 v26, 14, v25", w=V(26), r=V(25))
    e.valu("v_sub_u32 v26, v24, v26", w=V(26), r=V(24)+V(26))
    e.valu(f"v_add_u32 v27, s{sT1}, v25", w=V(27), r=V(25))
    e.valu("v_mul_u32_u24 v28, 192, v27", w=V(28), r=V(27))
    e.valu("v_lshl_add_u32 v28, v26, 4, v28", w=V(28), r=V(26)+V(28))
    e.valu("v_cmp_gt_u32 vcc, 224, v27", r=V(27), sw=["vcc"])
    e.valu(f"v_cmp_gt_u32 s[{sM}:{sM+1}], 12, v26", r=V(26), sw=[sM])
    e.salu(f"s_and_b64 vcc, vcc, s[{sM}:{sM+1}]", sr=["vcc", sM])
    e.valu(f"v_cmp_gt_u32 s[{sM}:{sM+1}], 18, v25", r=V(25), sw=[sM])
    e.salu(f"s_and_b64 vcc, vcc, s[{sM}:{sM+1}]", sr=["vcc", sM])
    e.raw("s_nop 1", 2)
    e.valu(f"v_cndmask_b32 v{vD+k}, v29, v28, vcc", w=V(vD+k), r=V(29)+V(28))
e.salu(f"s_lshl_b32 s{sT0}, s{sW}, 6")
e.salu(f"s_lshr_b32 s{sT1}, s{sX0}, 1")
e.salu(f"s_sub_u32 s{sT1}, s{sT1}, 1")
e.valu(f"v_add_u32 v24, s{sT0}, v{vLANE}", w=V(24), r=V(vLANE))
e.valu("v_mul_u32_u24 v25, 5462, v24", w=V(25), r=V(24))
e.valu("v_lshrrev_b32 v25, 16, v25", w=V(25), r=V(25))
e.valu("v_mul_u32_u24 v26, 12, v25", w=V(26), r=V(25))
e.valu("v_sub_u32 v26, v24, v26", w=V(26), r=V(24)+V(26))
e.valu(f"v_add_u32 v27, s{sT1}, v25", w=V(27), r=V(25))
e.valu("v_mul_u32_u24 v28, 192, v27", w=V(28), r=V(27))
e.valu("v_lshl_add_u32 v28, v26, 4, v28", w=V(28), r=V(26)+V(28))
e.valu("v_cmp_gt_u32 vcc, 112, v27", r=V(27), sw=["vcc"])
e.valu(f"v_cmp_gt_u32 s[{sM}:{sM+1}], 10, v25", r=V(25), sw=[sM])
e.salu(f"s_and_b64 vcc, vcc, s[{sM}:{sM+1}]", sr=["vcc", sM])
e.raw("s_nop 1", 2)
e.valu(f"v_cndmask_b32 v{vD+2}, v29, v28, vcc", w=V(vD+2), r=V(29)+V(28))
e.salu(f"s_lshl_b32 s{sLB}, s{sW}, 11")
e.salu(f"s_lshl_b32 s{sT3}, s{sW}, 10")
e.raw("s_waitcnt lgkmcnt(0)")
for (srd, p, nb) in ((SF, 4, FINE_B), (SP, 6, COARSE_B)):
    e.salu(f"s_mov_b32 s{srd}, s{p}")
    e.salu(f"s_mov_b32 s{srd+1}, s{p+1}")
    e.salu(f"s_mov_b32 s{srd+3}, 0x20000")
def fine_row(r):
    if r == 0:
        e.salu(f"s_cmp_eq_u32 s{sY0}, 0")
        e.salu(f"s_cselect_b32 s{SF+2}, 0, {FINE_B}")
        e.salu(f"s_max_i32 s{sT0}, s{sROW0}, 0")
    else:
        if r == 14:
            e.salu(f"s_cmp_eq_u32 s{sY0}, 211")
            e.salu(f"s_cselect_b32 s{SF+2}, 0, {FINE_B}")
        e.salu(f"s_add_u32 s{sT0}, s{sROW0}, {r*ROWB}")
    for k in range(2):
        e.salu(f"s_add_u32 m0, s{sLB}, {MB + r*MP + k*1024}", m0=True)
        e.vmem(f"buffer_load_dwordx4 v{vD+k}, s[{SF}:{SF+3}], s{sT0} offen lds", r=V(vD+k), dma=True)
    if r in (0, 14):
        e.salu(f"s_mov_b32 s{SF+2}, {FINE_B}")
def coarse_row(cr):
    if cr == 0:
        e.salu(f"s_cmp_eq_u32 s{sY0}, 0")
        e.salu(f"s_cselect_b32 s{SP+2}, 0, {COARSE_B}")
        e.salu(f"s_max_i32 s{sT0}, s{sCROW0}, 0")
    else:
        if cr == 7:
            e.salu(f"s_cmp_eq_u32 s{sY0}, 211")
            e.salu(f"s_cselect_b32 s{SP+2}, 0, {COARSE_B}")
        e.salu(f"s_add_u32 s{sT0}, s{sCROW0}, {cr*CROWB}")
    e.salu(f"s_add_u32 m0, s{sT3}, {PB + cr*PP}", m0=True)
    e.vmem(f"buffer_load_dwordx4 v{vD+2}, s[{SP}:{SP+3}], s{sT0} offen lds", r=V(vD+2), dma=True)
    if cr in (0, 7):
        e.salu(f"s_mov_b32 s{SP+2}, {COARSE_B}")
stamp("dma-issue-begin")
for (a, b, c, d) in ((0, 14, 0, 7), (1, 13, 1, 6), (2, 12, 2, 5)):
    fine_row(a); fine_row(b); coarse_row(c); coarse_row(d)
fine_row(3); fine_row(11)
coarse_row(3); coarse_row(4)
for r in (4, 10, 5, 9, 6, 8, 7): fine_row(r)
e.raw("s_branch L_setup")
e.region_end()
e.label("L_wload")
e.region_begin()
e.salu(f"s_mul_i32 s{sT0}, s{sH}, 3072")
for p in range(3):
    if p == 0: e.valu(f"v_mov_b32 v24, v{vLANE}", w=V(24), r=V(vLANE))
    else:      e.valu("v_add_u32 v24, 64, v24", w=V(24), r=V(24))
    e.valu("v_mul_u32_u24 v25, 5462, v24", w=V(25), r=V(24))
    e.valu("v_lshrrev_b32 v25, 16, v25", w=V(25), r=V(25))
    e.valu("v_mul_u32_u24 v26, 12, v25", w=V(26), r=V(25))
    e.valu("v_sub_u32 v26, v24, v26", w=V(26), r=V(24)+V(26))
    e.valu("v_lshrrev_b32 v27, 3, v25", w=V(27), r=V(25))
    e.valu("v_lshlrev_b32 v27, 1, v27", w=V(27), r=V(27))
    e.valu("v_xor_b32 v26, v26, v27", w=V(26), r=V(26)+V(27))
    e.valu("v_mul_u32_u24 v28, 192, v25", w=V(28), r=V(25))
    e.valu("v_lshl_add_u32 v28, v26, 4, v28", w=V(28), r=V(26)+V(28))
    e.valu(f"v_add_u32 v{vD+p}, s{sT0}, v28", w=V(vD+p), r=V(28))
e.salu(f"s_add_u32 s{sLB}, s{sT0}, {WB}")
e.raw("s_waitcnt lgkmcnt(0)")
for (srd, p, nb) in ((SWL, 8, WLAT_B), (SWO, 10, WOUT_B)):
    e.salu(f"s_mov_b32 s{srd}, s{p}")
    e.salu(f"s_mov_b32 s{srd+1}, s{p+1}")
    e.salu(f"s_mov_b32 s{srd+2}, {nb}")
    e.salu(f"s_mov_b32 s{srd+3}, 0x20000")
def chunk_dma_ops(j):
    slot = (j + 1) % 4
    ops = []
    for blk in range(3):
        for p in range(3):
            def f(blk=blk, p=p):
                if p == 0:
                    so = blk*6144 if j < 0 else j*6144 + blk*55296
                    e.salu(f"s_mov_b32 s{sT1}, {so}")
                e.salu(f"s_add_u32 m0, s{sLB}, {slot*WS + blk*6144 + p*1024}", m0=True)
                srd = SWL if j < 0 else SWO
                e.vmem(f"buffer_load_dwordx4 v{vD+p}, s[{srd}:{srd+3}], s{sT1} offen lds", r=V(vD+p), dma=True)
            ops.append(f)
    return ops
if args.stamps:
    nstamp[0] -= 1; stamp("dma-issue-begin")
for j in (-1, 0, 1, 2):
    for f in chunk_dma_ops(j): f()
e.region_end()
e.label("L_setup")
stamp("dma-issue-end")

e.salu(f"s_mov_b32 s{SO}, s12")
e.salu(f"s_mov_b32 s{SO+1}, s13")
e.salu(f"s_mov_b32 s{SO+2}, {FINE_B}")
e.salu(f"s_mov_b32 s{SO+3}, 0x20000")
e.salu(f"s_mov_b32 s{SWO}, s10")
e.salu(f"s_mov_b32 s{SWO+1}, s11")
e.salu(f"s_mov_b32 s{SWO+2}, {WOUT_B}")
e.salu(f"s_mov_b32 s{SWO+3}, 0x20000")
e.valu(f"v_and_b32 v23, 15, v{vLANE}", w=V(23), r=V(vLANE))
e.valu(f"v_lshrrev_b32 v24, 4, v{vLANE}", w=V(24), r=V(vLANE))
e.valu(f"v_mul_u32_u24 v{vM}, {S}, v23", w=V(vM), r=V(23))
e.valu(f"v_lshl_add_u32 v{vM}, v24, 4, v{vM}", w=V(vM), r=V(24)+V(vM))
e.salu(f"s_mul_i32 s{sT0}, s{sG}, {14*MP}")
e.salu(f"s_mul_i32 s{sT1}, s{sG}, {-2*MP & 0xffffffff}")
e.salu(f"s_add_u32 s{sT1}, s{sT1}, {MP}")
e.valu(f"v_add_u32 v{vROW}, s{sT0}, v{vM}", w=V(vROW), r=V(vM))
for k in range(1, 8):
    e.valu(f"v_add_u32 v{vROW+k}, s{sT1}, v{vROW+k-1}", w=V(vROW+k), r=V(vROW+k-1))
e.valu("v_lshrrev_b32 v25, 2, v23", w=V(25), r=V(23))
e.valu("v_lshl_add_u32 v25, v24, 3, v25", w=V(25), r=V(24)+V(25))
e.valu("v_mul_u32_u24 v25, 192, v25", w=V(25), r=V(25))
e.valu(f"v_add_u32 v25, {WB}, v25", w=V(25), r=V(25))
e.valu(f"v_and_b32 v26, 3, v{vLANE}", w=V(26), r=V(vLANE))
e.valu("v_and_b32 v27, 1, v24", w=V(27), r=V(24))
e.valu("v_lshlrev_b32 v28, 1, v27", w=V(28), r=V(27))
e.valu("v_xor_b32 v28, v26, v28", w=V(28), r=V(26)+V(28))
e.valu(f"v_lshl_add_u32 v{vWL}, v28, 4, v25", w=V(vWL), r=V(28)+V(25))
e.valu("v_lshl_add_u32 v25, v26, 3, v25", w=V(25), r=V(26)+V(25))
e.salu(f"s_mul_i32 s{sT0}, s{sH}, 96")
e.valu(f"v_add_u32 v25, s{sT0}, v25", w=V(25), r=V(25))
e.salu(f"s_cmp_eq_u32 s{sH}, 0")
e.salu(f"s_cselect_b32 s{sT0}, 32, -32")
e.valu(f"v_mul_i32_i24 v27, s{sT0}, v27", w=V(27), r=V(27))
e.valu("v_add_u32 v28, v25, v27", w=V(28), r=V(25)+V(27))
e.valu("v_sub_u32 v25, v25, v27", w=V(25), r=V(25)+V(27))
e.salu(f"s_mul_i32 s{sT0}, s{sG}, 12288")
e.salu(f"s_sub_u32 s{sT1}, 12288, s{sT0}")
e.valu(f"v_add_u32 v{vWE}, s{sT0}, v28", w=V(vWE), r=V(28))
e.valu(f"v_add_u32 v{vWE+1}, 6144, v28", w=V(vWE+1), r=V(28))
e.valu(f"v_add_u32 v{vWE+2}, s{sT1}, v28", w=V(vWE+2), r=V(28))
e.valu(f"v_add_u32 v{vWO_}, s{sT0}, v25", w=V(vWO_), r=V(25))
e.valu(f"v_add_u32 v{vWO_+1}, 6144, v25", w=V(vWO_+1), r=V(25))
e.valu(f"v_add_u32 v{vWO_+2}, s{sT1}, v25", w=V(vWO_+2), r=V(25))
e.valu("v_add_u32 v25, 1, v23", w=V(25), r=V(23))
e.valu("v_lshrrev_b32 v25, 1, v25", w=V(25), r=V(25))
e.valu("v_mul_u32_u24 v25, 192, v25", w=V(25), r=V(25))
e.valu(f"v_lshl_add_u32 v25, v24, 4, v25", w=V(25), r=V(24)+V(25))
e.valu(f"v_add_u32 v{vPL}, {PB}, v25", w=V(vPL), r=V(25))
e.valu(f"v_add_u32 v25, s{sX0}, v23", w=V(25), r=V(23))
e.valu("v_mul_u32_u24 v25, 192, v25", w=V(25), r=V(25))
e.valu("v_lshl_add_u32 v25, v24, 3, v25", w=V(25), r=V(24)+V(25))
e.salu(f"s_mul_i32 s{sT0}, s{sH}, 96")
e.valu(f"v_add_u32 v{vOUT}, s{sT0}, v25", w=V(vOUT), r=V(25))
e.salu(f"s_mul_i32 s{sT0}, s{sG}, 12")
e.salu(f"s_add_u32 s{sT0}, s{sT0}, s{sY0}")
e.salu(f"s_mul_i32 s{sOROW}, s{sT0}, {ROWB}")
e.salu(f"s_mul_i32 s{sOSTEP}, s{sG}, {-2*ROWB & 0xffffffff}")
e.salu(f"s_add_u32 s{sOSTEP}, s{sOSTEP}, {ROWB}")

def row_desc(va, vp, rowadd):
    e.salu(f"s_add_u32 s{sT0}, s{sW}, {rowadd}")
    e.salu(f"s_lshl_b32 s{sT1}, s{sT0}, 12")
    e.valu(f"v_add_u32 v{va}, s{sT1}, v{vM}", w=V(va), r=V(vM))
    e.salu(f"s_add_u32 s{sT0}, s{sT0}, s{sPAR}")
    e.salu(f"s_lshr_b32 s{sT0}, s{sT0}, 1")
    e.salu(f"s_lshl_b32 s{sT0}, s{sT0}, 11")
    e.valu(f"v_add_u32 v{vp}, s{sT0}, v{vPL}", w=V(vp), r=V(vPL))
def edge_desc(va, vp, which):
    e.valu(f"v_and_b32 v23, 15, v{vLANE}", w=V(23), r=V(vLANE))
    e.valu(f"v_lshrrev_b32 v24, 4, v{vLANE}", w=V(24), r=V(vLANE))
    e.valu("v_lshrrev_b32 v25, 1, v23", w=V(25), r=V(23))
    if which == 0:
        e.valu("v_lshrrev_b32 v26, 2, v25", w=V(26), r=V(25))
        e.valu("v_mad_u32_u24 v25, v26, 7, v25", w=V(25), r=V(26)+V(25))
    else:
        e.valu("v_add_u32 v25, 4, v25", w=V(25), r=V(25))
        e.valu("v_min_u32 v25, 10, v25", w=V(25), r=V(25))
    e.valu("v_and_b32 v23, 1, v23", w=V(23), r=V(23))
    e.valu(f"v_mul_u32_u24 v26, {S}, v23", w=V(26), r=V(23))
    e.valu("v_lshl_add_u32 v26, v25, 12, v26", w=V(26), r=V(25)+V(26))
    e.valu("v_lshl_add_u32 v26, v24, 4, v26", w=V(26), r=V(24)+V(26))
    e.valu(f"v_add_u32 v{va}, {MB + 16*S}, v26", w=V(va), r=V(26))
    e.valu(f"v_add_u32 v25, s{sPAR}, v25", w=V(25), r=V(25))
    e.valu("v_lshrrev_b32 v25, 1, v25", w=V(25), r=V(25))
    e.valu("v_mul_u32_u24 v26, 192, v23", w=V(26), r=V(23))
    e.valu("v_lshl_add_u32 v26, v25, 11, v26", w=V(26), r=V(25)+V(26))
    e.valu("v_lshl_add_u32 v26, v24, 4, v26", w=V(26), r=V(24)+V(26))
    e.valu(f"v_add_u32 v{vp}, {PB + 8*192}, v26", w=V(vp), r=V(26))

def role_wait(wn, inn):
    if wn is not None:
        with Region(f"s_cmp_ge_u32 s{sW}, 2"): e.wait_vm(wn)
    if inn is not None:
        with Region(f"s_cmp_lt_u32 s{sW}, 2"): e.wait_vm(inn)

def pull_ops(j):
    slot = (j + 1) % 4
    ops = []
    if j < 0:
        for s in range(3):
            for t in range(6):
                u, ee = t >> 1, t & 1
                for hh in range(2):
                    k, b = wlreg(t, s)
                    off = slot*WS + s*6144 + hh*768 + 64*u + 8*ee
                    def f(k=k, b=b, off=off, hh=hh):
                        e.ds_read(f"ds_read_b64_tr_b16 {rs(k, b+2*hh, 2)}, v{vWL} offset:{off}", R(k, b+2*hh, 2), V(vWL))
                    ops.append(f)
    else:
        for dip in range(3):
            for t in range(3):
                for hh in range(2):
                    k, b = wreg(j, dip, t)
                    va = (vWE if t % 2 == 0 else vWO_) + dip
                    off = slot*WS + hh*768 + 32*t
                    def f(k=k, b=b, off=off, hh=hh, va=va):
                        e.ds_read(f"ds_read_b64_tr_b16 {rs(k, b+2*hh, 2)}, v{va} offset:{off}", R(k, b+2*hh, 2), V(va))
                    ops.append(f)
    return ops
def pull_last_regs(j):
    if j < 0: k, b = wlreg(5, 2)
    else: k, b = wreg(j, 2, 2)
    return R(k, b+2, 2)

def issue_chunk(j):
    with Region(f"s_cmp_ge_u32 s{sW}, 2"):
        for f in chunk_dma_ops(j): f()

def interleave(main, fill, per=2, start=0):
    fi = 0
    for n, m in enumerate(main):
        m()
        if n >= start:
            for _ in range(per):
                if fi < len(fill): fill[fi](); fi += 1
    while fi < len(fill): fill[fi](); fi += 1

def lat_reads(base, va, vp):
    X = base; A = base + 12
    ops = []
    for u in range(3):
        def f(u=u): e.ds_read(f"ds_read_b128 v[{A+8*u+4}:{A+8*u+7}], v{vp} offset:{64*u}", V(A+8*u+4, 4), V(vp))
        ops.append(f)
    for s in range(3):
        def f(s=s): e.ds_read(f"ds_read_b128 v[{X+4*s}:{X+4*s+3}], v{va} offset:{64*s}", V(X+4*s, 4), V(va))
        ops.append(f)
    return ops
def lat_unpack(base):
    A = base + 12
    ops = []
    for u in range(3):
        a = A + 8*u
        seq = [(a+0, a+4, 0), (a+1, a+4, 1), (a+2, a+5, 0), (a+3, a+5, 1),
               (a+4, a+6, 0), (a+5, a+6, 1), (a+6, a+7, 0), (a+7, a+7, 1)]
        for (d, s_, hi) in seq:
            def f(d=d, s_=s_, hi=hi):
                if hi: e.valu(f"v_and_b32 v{d}, 0xffff0000, v{s_}", w=V(d), r=V(s_))
                else:  e.valu(f"v_lshlrev_b32 v{d}, 16, v{s_}", w=V(d), r=V(s_))
            ops.append(f)
    return ops
def lat_mfma(base):
    X = base; A = base + 12
    ops = []
    for s in range(3):
        for t in range(6):
            def f(s=s, t=t): e.mfma(('v', A+4*t), wlreg(t, s), ('v', X+4*s), ('v', A+4*t))
            ops.append(f)
    return ops
def lat_store(base, va):
    X = base; A = base + 12
    ops = []
    for u in range(3):
        for d in range(4):
            def f(u=u, d=d):
                e.valu(f"v_cvt_pk_bf16_f32 v{X+4*u+d}, v{A+8*u+2*d}, v{A+8*u+2*d+1}", w=V(X+4*u+d), r=V(A+8*u+2*d, 2))
            ops.append(f)
        def f(u=u): e.ds_write(f"ds_write_b128 v{va}, v[{X+4*u}:{X+4*u+3}] offset:{64*u}", V(va) + V(X+4*u, 4))
        ops.append(f)
    return ops
def lateral_pair(extra_fill=()):
    for f in lat_reads(vLA, vLAa, vLAp): f()
    for f in lat_reads(vLB, vLBa, vLBp): f()
    for f in lat_unpack(vLA): f()
    interleave(lat_mfma(vLA), lat_unpack(vLB) + list(extra_fill[:12]), per=2)
    interleave(lat_mfma(vLB), list(extra_fill[12:]) + lat_store(vLA, vLAa), per=2, start=0)
    for f in lat_store(vLB, vLBa): f()
def lateral_single():
    for f in lat_reads(vLA, vLAa, vLAp): f()
    for f in lat_unpack(vLA): f()
    for f in lat_mfma(vLA): f()
    for f in lat_store(vLA, vLAa): f()

inited = set()
def conv_mfma(j, rp, dip, t, fr):
    o = rp - dip
    def f():
        first = (o, t) not in inited
        inited.add((o, t))
        e.mfma(acc(o, t), wreg(j, dip, t), ('v', fr), None if first else acc(o, t))
    return f
def frag_read(j, rp, fr):
    dj, s = divmod(j, 3)
    def f():
        e.ds_read(f"ds_read_b128 v[{fr}:{fr+3}], v{vROW+rp} offset:{dj*S + 64*s}", V(fr, 4), V(vROW+rp))
    return f
def epilogue_ops(o):
    ops = []
    a = vACC + 12*o
    for t in range(3):
        for d in range(2):
            def f(t=t, d=d):
                e.valu(f"v_cvt_pk_bf16_f32 v{a+4*t+d}, v{a+4*t+2*d}, v{a+4*t+2*d+1}", w=V(a+4*t+d), r=V(a+4*t+2*d, 2))
            ops.append(f)
    def st():
        def body():
            for t in range(3):
                if args.nostore: continue
                e.vmem(f"buffer_store_dwordx2 v[{a+4*t}:{a+4*t+1}], v{vOUT}, s[{SO}:{SO+3}], s{sOROW} offen offset:{32*t} {args.stflag}",
                       r=V(a+4*t, 2) + V(vOUT))
        if o == 0:
            e.salu(f"s_sub_u32 s{sT0}, s{sNR}, s{sG}")
            with Region(f"s_cmp_ge_u32 s{sT0}, 12"): body()
        else: body()
        e.salu(f"s_add_u32 s{sOROW}, s{sOROW}, s{sOSTEP}")
    ops.append(st)
    return ops

RA = 4
row_desc(vLAa, vLAp, 0)
row_desc(vLBa, vLBp, 11)
role_wait(27, None); stamp("wlat landed"); e.barrier()
for f in pull_ops(-1): f()
role_wait(18, None); stamp("c0 landed"); e.wait_for(pull_last_regs(-1)); e.barrier()
issue_chunk(3)
for f in pull_ops(0): f()
role_wait(18, 16); stamp("c1/b1 landed"); e.wait_for(pull_last_regs(0)); e.barrier()
issue_chunk(4)
lateral_pair(pull_ops(1))
with Region(f"s_cmp_eq_u32 s{sW}, 0"):
    edge_desc(vLAa, vLAp, 0)
    lateral_single()
row_desc(vLAa, vLAp, 4)
row_desc(vLBa, vLBp, 8)
with Region(f"s_cmp_eq_u32 s{sW}, 3"):
    edge_desc(vLBa, vLBp, 1)
role_wait(18, None); e.wait_lgkm0(); stamp("lat1 done/c2 landed"); e.barrier()

def frbuf(j, rp): return vFR + 16*(j % 2) + 4*rp
for rp in range(RA): frag_read(0, rp, frbuf(0, rp))()
for j in range(9):
    if j <= 3: issue_chunk(j + 5)
    main = []
    for rp in range(RA):
        for dip in range(3):
            if rp - dip < 0: continue
            for t in range(3): main.append(conv_mfma(j, rp, dip, t, frbuf(j, rp)))
    fill = []
    if j + 2 <= 8: fill += pull_ops(j + 2)
    if j + 1 <= 8: fill += [frag_read(j+1, rp, frbuf(j+1, rp)) for rp in range(RA)]
    interleave(main, fill, per=1)
    if j == 2:
        stamp("step2 mfma done")
        lateral_pair()
        stamp("lat2 done")
    if j + 2 <= 8 - 1 + 0 or j + 3 <= 8:
        pass
    if j + 3 <= 8:
        wn = 18 if j + 3 <= 6 else (9 if j + 3 == 7 else 0)
        inn = 0 if j == 1 else None
        role_wait(wn, inn)
        if j == 2: e.wait_lgkm0()
        else: e.wait_for(pull_last_regs(j + 2))
        stamp(f"step{j} end"); e.barrier()
stamp("phaseA end")

pend = epilogue_ops(0) + epilogue_ops(1)
seq = [(rp, j) for rp in (4, 5, 6) for j in range(9)]
NB = 8
def fb(n): return vFR + 4*(n % NB)
PF = 3
for n in range(PF): frag_read(seq[n][1], seq[n][0], fb(n))()
for n, (rp, j) in enumerate(seq):
    main = [conv_mfma(j, rp, dip, t, fb(n)) for dip in (2, 1, 0) for t in range(3)]
    fill = []
    if n + PF < len(seq): fill.append(frag_read(seq[n+PF][1], seq[n+PF][0], fb(n+PF)))
    take = pend[:8]; pend = pend[8:]
    interleave(main, fill + take, per=1, start=1)
    if j == 8: pend += epilogue_ops(rp - 2)
stamp("rows456 done")
JG = {0: [0, 1, 2, 3], 1: [4, 5, 6, 7, 8]}
for g in (0, 1):
    with Region(f"s_cmp_eq_u32 s{sG}, {g}"):
        for n, j in enumerate(JG[g]): frag_read(j, 7, fb(n))()
        for n, j in enumerate(JG[g]):
            for t in range(3): conv_mfma(j, 7, 1, t, fb(n))()
        if g == 1:
            e.salu(f"s_mul_i32 s{sT0}, s{sH}, 3072")
            e.valu(f"v_lshlrev_b32 v23, 4, v{vLANE}", w=V(23), r=V(vLANE))
            e.valu(f"v_add_u32 v23, s{sT0}, v23", w=V(23), r=V(23))
            for t in range(3):
                a = vACC + 72 + 4*t
                e.ds_write(f"ds_write_b128 v23, v[{a}:{a+3}] offset:{PB + 1024*t}", V(23) + V(a, 4))
for n in range(PF): frag_read(n, 7, fb(n))()
for j in range(9):
    main = [conv_mfma(j, 7, 2, t, fb(j)) for t in range(3)]
    fill = []
    if j + PF < 9: fill.append(frag_read(j+PF, 7, fb(j+PF)))
    take = pend[:3]; pend = pend[3:]
    interleave(main, fill + take, per=2, start=0)
for f in pend: f()
e.wait_lgkm0()
e.barrier()
for f in epilogue_ops(5): f()
with Region(f"s_cmp_eq_u32 s{sG}, 0"):
    e.salu(f"s_mul_i32 s{sT0}, s{sH}, 3072")
    e.valu(f"v_lshlrev_b32 v23, 4, v{vLANE}", w=V(23), r=V(vLANE))
    e.valu(f"v_add_u32 v23, s{sT0}, v23", w=V(23), r=V(23))
    for t in range(3):
        e.ds_read(f"ds_read_b128 v[{vFR+4*t}:{vFR+4*t+3}], v23 offset:{PB + 1024*t}", V(vFR+4*t, 4), V(23))
    for k in range(12):
        a = vACC + 72 + k
        e.valu(f"v_add_f32 v{a}, v{a}, v{vFR+k}", w=V(a), r=V(a) + V(vFR+k))
    for f in epilogue_ops(6): f()
stamp("end")
if args.stamps:
    e.raw("s_waitcnt vmcnt(0)")
    stamp("stores done")
    rtstamp("end")
    e.raw("s_waitcnt lgkmcnt(0)")
    e.salu(f"s_lshl_b32 s{sT0}, s2, 2")
    e.salu(f"s_add_u32 s{sT0}, s{sT0}, s{sW}")
    e.salu(f"s_lshl_b32 s{sT0}, s{sT0}, 8")
    e.salu("s_mov_b32 s20, s16"); e.salu("s_mov_b32 s21, s17"); e.salu("s_mov_b32 s22, 0x100000"); e.salu("s_mov_b32 s23, 0x20000")
    e.valu("v_mov_b32 v23, 0", w=V(23))
    e.raw("s_mov_b64 exec, 1")
    for k in range(nstamp[0]):
        e.valu(f"v_mov_b32 v24, s{sSTAMP+2*k}", w=V(24))
        e.valu(f"v_mov_b32 v25, s{sSTAMP+2*k+1}", w=V(25))
        e.vmem(f"buffer_store_dwordx2 v[24:25], v23, s[20:23], s{sT0} offen offset:{8*k}", r=V(23, 3))
        e.raw("s_nop 1")
if args.dbg:
    e.raw("s_waitcnt vmcnt(0)")
    e.raw("s_memtime s[64:65]")
    e.raw("s_memrealtime s[66:67]")
    e.raw("s_waitcnt lgkmcnt(0)")
    e.salu("s_sub_u32 s64, s64, s60")
    e.salu("s_sub_u32 s66, s66, s62")
    e.salu("s_mov_b32 s20, s16"); e.salu("s_mov_b32 s21, s17"); e.salu("s_mov_b32 s22, 256"); e.salu("s_mov_b32 s23, 0x20000")
    e.salu(f"s_cmp_lg_u32 s{sW}, 0")
    e.raw("s_cbranch_scc1 L_end")
    e.salu("s_cmp_ge_u32 s2, 6")
    e.raw("s_cbranch_scc1 L_dbg2")
    e.salu("s_lshl_b32 s47, s2, 3")
    e.valu("v_mov_b32 v23, 0", w=V(23))
    e.valu("v_mov_b32 v24, s64", w=V(24))
    e.valu("v_mov_b32 v25, s66", w=V(25))
    e.raw("s_mov_b64 exec, 1")
    e.vmem("buffer_store_dwordx2 v[24:25], v23, s[20:23], s47 offen", r=V(23,3))
    e.label("L_dbg2")
    e.raw("s_mov_b64 exec, 1")
    e.salu("s_add_u32 s66, s66, s62")
    e.salu("s_not_b32 s62, s62")
    e.valu("v_mov_b32 v23, 0", w=V(23))
    e.valu("v_mov_b32 v24, s66", w=V(24))
    e.valu("v_mov_b32 v25, s62", w=V(25))
    e.vmem("buffer_atomic_umax v24, v23, s[20:23], 0 offen offset:48", r=V(23,3))
    e.vmem("buffer_atomic_umax v25, v23, s[20:23], 0 offen offset:52", r=V(23,3))
e.label("L_end")
e.raw("s_endpgm")

out.append(e.text())
out.append('.section .rodata,"a"')
out.append(".p2align 6")
out.append(f".amdhsa_kernel {args.name}")
out.append("  .amdhsa_next_free_vgpr 512")
out.append("  .amdhsa_next_free_sgpr 102")
out.append("  .amdhsa_accum_offset 256")
out.append("  .amdhsa_group_segment_fixed_size 0")
out.append("  .amdhsa_kernarg_size 56")
out.append("  .amdhsa_user_sgpr_count 2")
out.append("  .amdhsa_user_sgpr_kernarg_segment_ptr 1")
out.append("  .amdhsa_system_sgpr_workgroup_id_x 1")
out.append(".end_amdhsa_kernel")
print("\n".join(out))
sys.stderr.write(f"nops={e.nops} waits={e.waits} stamps={nstamp[0]} lines={len(e.lines)}\n")
```

```python
import sys, argparse
from emit import *

ap = argparse.ArgumentParser()
ap.add_argument("--stamps", action="store_true")
ap.add_argument("--name", default="standalone__detection_seg_fpn_lateral__vision_kernel")
ap.add_argument("--mode", default="full")
ap.add_argument("--stflag", default="")
ap.add_argument("--nostore", action="store_true")
ap.add_argument("--dbg", action="store_true")
ap.add_argument("--inflag", default="")
ap.add_argument("--wflag", default="")
args = ap.parse_args()

ROWB = 43008; CROWB = 21504
MB = 0; MP = 4096; S = 224
PB = 61440; PP = 2048
WB = 77824; WS = 18432
LDS = 151552
FINE_B = 9633792; COARSE_B = 2408448; WLAT_B = 18432; WOUT_B = 165888
INV = 0x40000000

SF, SP, SWL, SWO, SO = 20, 24, 28, 32, 36
sW, sX0, sY0, sNR, sPAR, sG, sH = 40, 41, 42, 43, 44, 45, 46
sT0, sT1, sT2, sT3 = 47, 48, 49, 50
sM = 52
sLB = 54
sROW0 = 55
sCROW0 = 56
sOROW = 57
sOSTEP = 58
sV0, sV14 = 59, 51
sSTAMP = 60
vLANE, vM = 1, 2
vROW = 3
vWE, vWO_ = 11, 14
vWL, vPL, vOUT = 17, 18, 19
vD = 20
vT = 23
vLAa, vLAp, vLBa, vLBp = 28, 29, 30, 31
vFR = 32
vACC = 64
vLA = 148
vLB = 112
WV = 184

e = Emit()
V = lambda n, k=1: R('v', n, k)
nstamp = [0]
def stamp(tag):
    if not args.stamps: return
    if args.mode != "full" and not (tag.startswith("vmcnt") or tag in ("start","dma-issue-begin","dma-issue-end","end","stores done")): return
    k = nstamp[0]; nstamp[0] += 1
    assert sSTAMP + 2*k + 1 < 102
    e.raw(f"s_memtime s[{sSTAMP+2*k}:{sSTAMP+2*k+1}]")

def rtstamp(tag):
    if not args.stamps: return
    k = nstamp[0]; nstamp[0] += 1
    e.raw(f"s_memrealtime s[{sSTAMP+2*k}:{sSTAMP+2*k+1}]")

def wreg(j, dip, t):
    idx = (dip*3 + t)*4
    if j < 7: return ('a', 36*j + idx)
    return ('v', WV + 36*(j-7) + idx)
def wlreg(t, s): return ('v', WV + (t*3 + s)*4)
def acc(o, t): return ('v', vACC + 12*o + 4*t)

lab = [0]
def newlabel(p="L"):
    lab[0] += 1; return f"{p}_{lab[0]}"

class Region:
    def __init__(self, cmp, drain=True): self.cmp = cmp; self.drain = drain
    def __enter__(self):
        self.l = newlabel("Lskip")
        e.salu(self.cmp)
        e.raw(f"s_cbranch_scc0 {self.l}")
        e.region_begin()
    def __exit__(self, *a):
        e.region_end(self.drain)
        e.label(self.l)

hdr = open("standalone__detection_seg_fpn_lateral__vision.s.ref").read().split("\n")
out = []
for l in hdr:
    if l.startswith("; @launch"): break
    out.append(l)
out.append(f"; @launch grid=(256,1,1) block=(256,1,1) lds={LDS}")
out.append('.amdgcn_target "amdgcn-amd-amdhsa--gfx950"')
out.append(".text")
out.append(f".globl {args.name}")
out.append(".p2align 8")
out.append(f".type {args.name},@function")
out.append(f"{args.name}:")

stamp("start")
rtstamp("start")
if args.dbg:
    e.raw("s_memtime s[60:61]")
    e.raw("s_memrealtime s[62:63]")
    e.raw("s_load_dwordx2 s[16:17], s[0:1], 40")
e.salu("s_cmp_ge_u32 s2, 256")
e.raw("s_cbranch_scc1 L_end")
e.raw("s_load_dwordx8 s[4:11], s[0:1], 0")
e.raw("s_load_dwordx2 s[12:13], s[0:1], 32")
if args.stamps: e.raw("s_load_dwordx2 s[16:17], s[0:1], 48")
e.valu("v_lshrrev_b32 v23, 6, v0", w=V(23), r=V(0))
e.valu(f"v_and_b32 v{vLANE}, 63, v0", w=V(vLANE), r=V(0))
e.valu(f"v_readfirstlane_b32 s{sW}, v23", r=V(23), sw=[sW], rfl=True)
e.salu(f"s_and_b32 s{sT0}, s2, 7")
e.salu(f"s_lshl_b32 s{sT0}, s{sT0}, 5")
e.salu(f"s_lshr_b32 s{sT1}, s2, 3")
e.salu(f"s_add_u32 s{sT0}, s{sT0}, s{sT1}")
e.salu(f"s_cmp_ge_u32 s{sT0}, 252")
e.raw("s_cbranch_scc1 L_end")
e.salu(f"s_mul_i32 s{sT1}, s{sT0}, 3641")
e.salu(f"s_lshr_b32 s{sT1}, s{sT1}, 16")
e.salu(f"s_mul_i32 s{sT2}, s{sT1}, 18")
e.salu(f"s_sub_u32 s{sT2}, s{sT0}, s{sT2}")
e.salu(f"s_lshl_b32 s{sX0}, s{sT1}, 4")
e.salu(f"s_mul_i32 s{sT3}, s{sT2}, 815584")
e.salu(f"s_lshr_b32 s{sY0}, s{sT3}, 16")
e.salu(f"s_add_u32 s{sT3}, s{sT3}, 815584")
e.salu(f"s_lshr_b32 s{sT3}, s{sT3}, 16")
e.salu(f"s_sub_u32 s{sNR}, s{sT3}, s{sY0}")
e.salu(f"s_sub_u32 s{sT0}, s{sY0}, 1")
e.salu(f"s_and_b32 s{sPAR}, s{sT0}, 1")
e.salu(f"s_mul_i32 s{sROW0}, s{sT0}, {ROWB}")
e.salu(f"s_ashr_i32 s{sT0}, s{sT0}, 1")
e.salu(f"s_mul_i32 s{sCROW0}, s{sT0}, {CROWB}")
e.salu(f"s_lshr_b32 s{sG}, s{sW}, 1", sr=[sW])
e.salu(f"s_and_b32 s{sH}, s{sW}, 1")
e.valu(f"v_mov_b32 v29, {INV:#x}", w=V(29))

e.salu(f"s_cmp_lt_u32 s{sW}, 2")
e.raw("s_cbranch_scc0 L_wload")
e.region_begin()
e.salu(f"s_lshl_b32 s{sT0}, s{sW}, 7")
e.salu(f"s_sub_u32 s{sT1}, s{sX0}, 1")
for k in range(2):
    if k == 0: e.valu(f"v_add_u32 v24, s{sT0}, v{vLANE}", w=V(24), r=V(vLANE))
    else:      e.valu(f"v_add_u32 v24, 64, v24", w=V(24), r=V(24))
    e.valu("v_mul_u32_u24 v25, 4682, v24", w=V(25), r=V(24))
    e.valu("v_lshrrev_b32 v25, 16, v25", w=V(25), r=V(25))
    e.valu("v_mul_u32_u24 v26, 14, v25", w=V(26), r=V(25))
    e.valu("v_sub_u32 v26, v24, v26", w=V(26), r=V(24)+V(26))
    e.valu(f"v_add_u32 v27, s{sT1}, v25", w=V(27), r=V(25))
    e.valu("v_mul_u32_u24 v28, 192, v27", w=V(28), r=V(27))
    e.valu("v_lshl_add_u32 v28, v26, 4, v28", w=V(28), r=V(26)+V(28))
    e.valu("v_cmp_gt_u32 vcc, 224, v27", r=V(27), sw=["vcc"])
    e.valu(f"v_cmp_gt_u32 s[{sM}:{sM+1}], 12, v26", r=V(26), sw=[sM])
    e.salu(f"s_and_b64 vcc, vcc, s[{sM}:{sM+1}]", sr=["vcc", sM])
    e.valu(f"v_cmp_gt_u32 s[{sM}:{sM+1}], 18, v25", r=V(25), sw=[sM])
    e.salu(f"s_and_b64 vcc, vcc, s[{sM}:{sM+1}]", sr=["vcc", sM])
    e.raw("s_nop 1", 2)
    e.valu(f"v_cndmask_b32 v{vD+k}, v29, v28, vcc", w=V(vD+k), r=V(29)+V(28))
e.salu(f"s_lshl_b32 s{sT0}, s{sW}, 6")
e.salu(f"s_lshr_b32 s{sT1}, s{sX0}, 1")
e.salu(f"s_sub_u32 s{sT1}, s{sT1}, 1")
e.valu(f"v_add_u32 v24, s{sT0}, v{vLANE}", w=V(24), r=V(vLANE))
e.valu("v_mul_u32_u24 v25, 5462, v24", w=V(25), r=V(24))
e.valu("v_lshrrev_b32 v25, 16, v25", w=V(25), r=V(25))
e.valu("v_mul_u32_u24 v26, 12, v25", w=V(26), r=V(25))
e.valu("v_sub_u32 v26, v24, v26", w=V(26), r=V(24)+V(26))
e.valu(f"v_add_u32 v27, s{sT1}, v25", w=V(27), r=V(25))
e.valu("v_mul_u32_u24 v28, 192, v27", w=V(28), r=V(27))
e.valu("v_lshl_add_u32 v28, v26, 4, v28", w=V(28), r=V(26)+V(28))
e.valu("v_cmp_gt_u32 vcc, 112, v27", r=V(27), sw=["vcc"])
e.valu(f"v_cmp_gt_u32 s[{sM}:{sM+1}], 10, v25", r=V(25), sw=[sM])
e.salu(f"s_and_b64 vcc, vcc, s[{sM}:{sM+1}]", sr=["vcc", sM])
e.raw("s_nop 1", 2)
e.valu(f"v_cndmask_b32 v{vD+2}, v29, v28, vcc", w=V(vD+2), r=V(29)+V(28))
e.salu(f"s_lshl_b32 s{sLB}, s{sW}, 11")
e.salu(f"s_lshl_b32 s{sT3}, s{sW}, 10")
e.raw("s_waitcnt lgkmcnt(0)")
for (srd, p, nb) in ((SF, 4, FINE_B), (SP, 6, COARSE_B)):
    e.salu(f"s_mov_b32 s{srd}, s{p}")
    e.salu(f"s_mov_b32 s{srd+1}, s{p+1}")
    e.salu(f"s_mov_b32 s{srd+3}, 0x20000")
def fine_row(r):
    if r == 0:
        e.salu(f"s_cmp_eq_u32 s{sY0}, 0")
        e.salu(f"s_cselect_b32 s{SF+2}, 0, {FINE_B}")
        e.salu(f"s_max_i32 s{sT0}, s{sROW0}, 0")
    else:
        if r == 14:
            e.salu(f"s_cmp_eq_u32 s{sY0}, 211")
            e.salu(f"s_cselect_b32 s{SF+2}, 0, {FINE_B}")
        e.salu(f"s_add_u32 s{sT0}, s{sROW0}, {r*ROWB}")
    for k in range(2):
        e.salu(f"s_add_u32 m0, s{sLB}, {MB + r*MP + k*1024}", m0=True)
        e.vmem(f"buffer_load_dwordx4 v{vD+k}, s[{SF}:{SF+3}], s{sT0} offen {args.inflag} lds", r=V(vD+k), dma=True)
    if r in (0, 14):
        e.salu(f"s_mov_b32 s{SF+2}, {FINE_B}")
def coarse_row(cr):
    if cr == 0:
        e.salu(f"s_cmp_eq_u32 s{sY0}, 0")
        e.salu(f"s_cselect_b32 s{SP+2}, 0, {COARSE_B}")
        e.salu(f"s_max_i32 s{sT0}, s{sCROW0}, 0")
    else:
        if cr == 7:
            e.salu(f"s_cmp_eq_u32 s{sY0}, 211")
            e.salu(f"s_cselect_b32 s{SP+2}, 0, {COARSE_B}")
        e.salu(f"s_add_u32 s{sT0}, s{sCROW0}, {cr*CROWB}")
    e.salu(f"s_add_u32 m0, s{sT3}, {PB + cr*PP}", m0=True)
    e.vmem(f"buffer_load_dwordx4 v{vD+2}, s[{SP}:{SP+3}], s{sT0} offen {args.inflag} lds", r=V(vD+2), dma=True)
    if cr in (0, 7):
        e.salu(f"s_mov_b32 s{SP+2}, {COARSE_B}")
stamp("dma-issue-begin")
if args.mode != "wonly":
    for (a, b, c, d) in ((0, 14, 0, 7), (1, 13, 1, 6), (2, 12, 2, 5)):
        fine_row(a); fine_row(b); coarse_row(c); coarse_row(d)
    fine_row(3); fine_row(11)
    coarse_row(3); coarse_row(4)
    for r in (4, 10, 5, 9, 6, 8, 7): fine_row(r)
e.raw("s_branch L_setup")
e.region_end()
e.label("L_wload")
e.region_begin()
e.salu(f"s_mul_i32 s{sT0}, s{sH}, 3072")
for p in range(3):
    if p == 0: e.valu(f"v_mov_b32 v24, v{vLANE}", w=V(24), r=V(vLANE))
    else:      e.valu("v_add_u32 v24, 64, v24", w=V(24), r=V(24))
    e.valu("v_mul_u32_u24 v25, 5462, v24", w=V(25), r=V(24))
    e.valu("v_lshrrev_b32 v25, 16, v25", w=V(25), r=V(25))
    e.valu("v_mul_u32_u24 v26, 12, v25", w=V(26), r=V(25))
    e.valu("v_sub_u32 v26, v24, v26", w=V(26), r=V(24)+V(26))
    e.valu("v_lshrrev_b32 v27, 3, v25", w=V(27), r=V(25))
    e.valu("v_lshlrev_b32 v27, 1, v27", w=V(27), r=V(27))
    e.valu("v_xor_b32 v26, v26, v27", w=V(26), r=V(26)+V(27))
    e.valu("v_mul_u32_u24 v28, 192, v25", w=V(28), r=V(25))
    e.valu("v_lshl_add_u32 v28, v26, 4, v28", w=V(28), r=V(26)+V(28))
    e.valu(f"v_add_u32 v{vD+p}, s{sT0}, v28", w=V(vD+p), r=V(28))
e.salu(f"s_add_u32 s{sLB}, s{sT0}, {WB}")
e.raw("s_waitcnt lgkmcnt(0)")
for (srd, p, nb) in ((SWL, 8, WLAT_B), (SWO, 10, WOUT_B)):
    e.salu(f"s_mov_b32 s{srd}, s{p}")
    e.salu(f"s_mov_b32 s{srd+1}, s{p+1}")
    e.salu(f"s_mov_b32 s{srd+2}, {nb}")
    e.salu(f"s_mov_b32 s{srd+3}, 0x20000")
def chunk_dma_ops(j):
    slot = (j + 1) % 4
    ops = []
    for blk in range(3):
        for p in range(3):
            def f(blk=blk, p=p):
                if p == 0:
                    so = blk*6144 if j < 0 else j*6144 + blk*55296
                    e.salu(f"s_mov_b32 s{sT1}, {so}")
                e.salu(f"s_add_u32 m0, s{sLB}, {slot*WS + blk*6144 + p*1024}", m0=True)
                srd = SWL if j < 0 else SWO
                e.vmem(f"buffer_load_dwordx4 v{vD+p}, s[{srd}:{srd+3}], s{sT1} offen {args.wflag} lds", r=V(vD+p), dma=True)
            ops.append(f)
    return ops
if args.stamps:
    nstamp[0] -= 1; stamp("dma-issue-begin")
if args.mode != "inonly":
    for j in (-1, 0, 1, 2):
        for f in chunk_dma_ops(j): f()
e.region_end()
e.label("L_setup")
stamp("dma-issue-end")

e.salu(f"s_mov_b32 s{SO}, s12")
e.salu(f"s_mov_b32 s{SO+1}, s13")
e.salu(f"s_mov_b32 s{SO+2}, {FINE_B}")
e.salu(f"s_mov_b32 s{SO+3}, 0x20000")
e.salu(f"s_mov_b32 s{SWO}, s10")
e.salu(f"s_mov_b32 s{SWO+1}, s11")
e.salu(f"s_mov_b32 s{SWO+2}, {WOUT_B}")
e.salu(f"s_mov_b32 s{SWO+3}, 0x20000")
e.valu(f"v_and_b32 v23, 15, v{vLANE}", w=V(23), r=V(vLANE))
e.valu(f"v_lshrrev_b32 v24, 4, v{vLANE}", w=V(24), r=V(vLANE))
e.valu(f"v_mul_u32_u24 v{vM}, {S}, v23", w=V(vM), r=V(23))
e.valu(f"v_lshl_add_u32 v{vM}, v24, 4, v{vM}", w=V(vM), r=V(24)+V(vM))
e.salu(f"s_mul_i32 s{sT0}, s{sG}, {14*MP}")
e.salu(f"s_mul_i32 s{sT1}, s{sG}, {-2*MP & 0xffffffff}")
e.salu(f"s_add_u32 s{sT1}, s{sT1}, {MP}")
e.valu(f"v_add_u32 v{vROW}, s{sT0}, v{vM}", w=V(vROW), r=V(vM))
for k in range(1, 8):
    e.valu(f"v_add_u32 v{vROW+k}, s{sT1}, v{vROW+k-1}", w=V(vROW+k), r=V(vROW+k-1))
e.valu("v_lshrrev_b32 v25, 2, v23", w=V(25), r=V(23))
e.valu("v_lshl_add_u32 v25, v24, 3, v25", w=V(25), r=V(24)+V(25))
e.valu("v_mul_u32_u24 v25, 192, v25", w=V(25), r=V(25))
e.valu(f"v_add_u32 v25, {WB}, v25", w=V(25), r=V(25))
e.valu(f"v_and_b32 v26, 3, v{vLANE}", w=V(26), r=V(vLANE))
e.valu("v_and_b32 v27, 1, v24", w=V(27), r=V(24))
e.valu("v_lshlrev_b32 v28, 1, v27", w=V(28), r=V(27))
e.valu("v_xor_b32 v28, v26, v28", w=V(28), r=V(26)+V(28))
e.valu(f"v_lshl_add_u32 v{vWL}, v28, 4, v25", w=V(vWL), r=V(28)+V(25))
e.valu("v_lshl_add_u32 v25, v26, 3, v25", w=V(25), r=V(26)+V(25))
e.salu(f"s_mul_i32 s{sT0}, s{sH}, 96")
e.valu(f"v_add_u32 v25, s{sT0}, v25", w=V(25), r=V(25))
e.salu(f"s_cmp_eq_u32 s{sH}, 0")
e.salu(f"s_cselect_b32 s{sT0}, 32, -32")
e.valu(f"v_mul_i32_i24 v27, s{sT0}, v27", w=V(27), r=V(27))
e.valu("v_add_u32 v28, v25, v27", w=V(28), r=V(25)+V(27))
e.valu("v_sub_u32 v25, v25, v27", w=V(25), r=V(25)+V(27))
e.salu(f"s_mul_i32 s{sT0}, s{sG}, 12288")
e.salu(f"s_sub_u32 s{sT1}, 12288, s{sT0}")
e.valu(f"v_add_u32 v{vWE}, s{sT0}, v28", w=V(vWE), r=V(28))
e.valu(f"v_add_u32 v{vWE+1}, 6144, v28", w=V(vWE+1), r=V(28))
e.valu(f"v_add_u32 v{vWE+2}, s{sT1}, v28", w=V(vWE+2), r=V(28))
e.valu(f"v_add_u32 v{vWO_}, s{sT0}, v25", w=V(vWO_), r=V(25))
e.valu(f"v_add_u32 v{vWO_+1}, 6144, v25", w=V(vWO_+1), r=V(25))
e.valu(f"v_add_u32 v{vWO_+2}, s{sT1}, v25", w=V(vWO_+2), r=V(25))
e.valu("v_add_u32 v25, 1, v23", w=V(25), r=V(23))
e.valu("v_lshrrev_b32 v25, 1, v25", w=V(25), r=V(25))
e.valu("v_mul_u32_u24 v25, 192, v25", w=V(25), r=V(25))
e.valu(f"v_lshl_add_u32 v25, v24, 4, v25", w=V(25), r=V(24)+V(25))
e.valu(f"v_add_u32 v{vPL}, {PB}, v25", w=V(vPL), r=V(25))
e.valu(f"v_add_u32 v25, s{sX0}, v23", w=V(25), r=V(23))
e.valu("v_mul_u32_u24 v25, 192, v25", w=V(25), r=V(25))
e.valu("v_lshl_add_u32 v25, v24, 3, v25", w=V(25), r=V(24)+V(25))
e.salu(f"s_mul_i32 s{sT0}, s{sH}, 96")
e.valu(f"v_add_u32 v{vOUT}, s{sT0}, v25", w=V(vOUT), r=V(25))
e.salu(f"s_mul_i32 s{sT0}, s{sG}, 12")
e.salu(f"s_add_u32 s{sT0}, s{sT0}, s{sY0}")
e.salu(f"s_mul_i32 s{sOROW}, s{sT0}, {ROWB}")
e.salu(f"s_mul_i32 s{sOSTEP}, s{sG}, {-2*ROWB & 0xffffffff}")
e.salu(f"s_add_u32 s{sOSTEP}, s{sOSTEP}, {ROWB}")

def row_desc(va, vp, rowadd):
    e.salu(f"s_add_u32 s{sT0}, s{sW}, {rowadd}")
    e.salu(f"s_lshl_b32 s{sT1}, s{sT0}, 12")
    e.valu(f"v_add_u32 v{va}, s{sT1}, v{vM}", w=V(va), r=V(vM))
    e.salu(f"s_add_u32 s{sT0}, s{sT0}, s{sPAR}")
    e.salu(f"s_lshr_b32 s{sT0}, s{sT0}, 1")
    e.salu(f"s_lshl_b32 s{sT0}, s{sT0}, 11")
    e.valu(f"v_add_u32 v{vp}, s{sT0}, v{vPL}", w=V(vp), r=V(vPL))
def edge_desc(va, vp, which):
    e.valu(f"v_and_b32 v23, 15, v{vLANE}", w=V(23), r=V(vLANE))
    e.valu(f"v_lshrrev_b32 v24, 4, v{vLANE}", w=V(24), r=V(vLANE))
    e.valu("v_lshrrev_b32 v25, 1, v23", w=V(25), r=V(23))
    if which == 0:
        e.valu("v_lshrrev_b32 v26, 2, v25", w=V(26), r=V(25))
        e.valu("v_mad_u32_u24 v25, v26, 7, v25", w=V(25), r=V(26)+V(25))
    else:
        e.valu("v_add_u32 v25, 4, v25", w=V(25), r=V(25))
        e.valu("v_min_u32 v25, 10, v25", w=V(25), r=V(25))
    e.valu("v_and_b32 v23, 1, v23", w=V(23), r=V(23))
    e.valu(f"v_mul_u32_u24 v26, {S}, v23", w=V(26), r=V(23))
    e.valu("v_lshl_add_u32 v26, v25, 12, v26", w=V(26), r=V(25)+V(26))
    e.valu("v_lshl_add_u32 v26, v24, 4, v26", w=V(26), r=V(24)+V(26))
    e.valu(f"v_add_u32 v{va}, {MB + 16*S}, v26", w=V(va), r=V(26))
    e.valu(f"v_add_u32 v25, s{sPAR}, v25", w=V(25), r=V(25))
    e.valu("v_lshrrev_b32 v25, 1, v25", w=V(25), r=V(25))
    e.valu("v_mul_u32_u24 v26, 192, v23", w=V(26), r=V(23))
    e.valu("v_lshl_add_u32 v26, v25, 11, v26", w=V(26), r=V(25)+V(26))
    e.valu("v_lshl_add_u32 v26, v24, 4, v26", w=V(26), r=V(24)+V(26))
    e.valu(f"v_add_u32 v{vp}, {PB + 8*192}, v26", w=V(vp), r=V(26))

def role_wait(wn, inn):
    if wn is not None:
        with Region(f"s_cmp_ge_u32 s{sW}, 2"): e.wait_vm(wn)
    if inn is not None:
        with Region(f"s_cmp_lt_u32 s{sW}, 2"): e.wait_vm(inn)

def pull_ops(j):
    slot = (j + 1) % 4
    ops = []
    if j < 0:
        for s in range(3):
            for t in range(6):
                u, ee = t >> 1, t & 1
                for hh in range(2):
                    k, b = wlreg(t, s)
                    off = slot*WS + s*6144 + hh*768 + 64*u + 8*ee
                    def f(k=k, b=b, off=off, hh=hh):
                        e.ds_read(f"ds_read_b64_tr_b16 {rs(k, b+2*hh, 2)}, v{vWL} offset:{off}", R(k, b+2*hh, 2), V(vWL))
                    ops.append(f)
    else:
        for dip in range(3):
            for t in range(3):
                for hh in range(2):
                    k, b = wreg(j, dip, t)
                    va = (vWE if t % 2 == 0 else vWO_) + dip
                    off = slot*WS + hh*768 + 32*t
                    def f(k=k, b=b, off=off, hh=hh, va=va):
                        e.ds_read(f"ds_read_b64_tr_b16 {rs(k, b+2*hh, 2)}, v{va} offset:{off}", R(k, b+2*hh, 2), V(va))
                    ops.append(f)
    return ops
def pull_last_regs(j):
    if j < 0: k, b = wlreg(5, 2)
    else: k, b = wreg(j, 2, 2)
    return R(k, b+2, 2)

def issue_chunk(j):
    with Region(f"s_cmp_ge_u32 s{sW}, 2"):
        for f in chunk_dma_ops(j): f()

def interleave(main, fill, per=2, start=0):
    fi = 0
    for n, m in enumerate(main):
        m()
        if n >= start:
            for _ in range(per):
                if fi < len(fill): fill[fi](); fi += 1
    while fi < len(fill): fill[fi](); fi += 1

def lat_reads(base, va, vp):
    X = base; A = base + 12
    ops = []
    for u in range(3):
        def f(u=u): e.ds_read(f"ds_read_b128 v[{A+8*u+4}:{A+8*u+7}], v{vp} offset:{64*u}", V(A+8*u+4, 4), V(vp))
        ops.append(f)
    for s in range(3):
        def f(s=s): e.ds_read(f"ds_read_b128 v[{X+4*s}:{X+4*s+3}], v{va} offset:{64*s}", V(X+4*s, 4), V(va))
        ops.append(f)
    return ops
def lat_unpack(base):
    A = base + 12
    ops = []
    for u in range(3):
        a = A + 8*u
        seq = [(a+0, a+4, 0), (a+1, a+4, 1), (a+2, a+5, 0), (a+3, a+5, 1),
               (a+4, a+6, 0), (a+5, a+6, 1), (a+6, a+7, 0), (a+7, a+7, 1)]
        for (d, s_, hi) in seq:
            def f(d=d, s_=s_, hi=hi):
                if hi: e.valu(f"v_and_b32 v{d}, 0xffff0000, v{s_}", w=V(d), r=V(s_))
                else:  e.valu(f"v_lshlrev_b32 v{d}, 16, v{s_}", w=V(d), r=V(s_))
            ops.append(f)
    return ops
def lat_mfma(base):
    X = base; A = base + 12
    ops = []
    for s in range(3):
        for t in range(6):
            def f(s=s, t=t): e.mfma(('v', A+4*t), wlreg(t, s), ('v', X+4*s), ('v', A+4*t))
            ops.append(f)
    return ops
def lat_store(base, va):
    X = base; A = base + 12
    ops = []
    for u in range(3):
        for d in range(4):
            def f(u=u, d=d):
                e.valu(f"v_cvt_pk_bf16_f32 v{X+4*u+d}, v{A+8*u+2*d}, v{A+8*u+2*d+1}", w=V(X+4*u+d), r=V(A+8*u+2*d, 2))
            ops.append(f)
        def f(u=u): e.ds_write(f"ds_write_b128 v{va}, v[{X+4*u}:{X+4*u+3}] offset:{64*u}", V(va) + V(X+4*u, 4))
        ops.append(f)
    return ops
def lateral_pair(extra_fill=()):
    for f in lat_reads(vLA, vLAa, vLAp): f()
    for f in lat_reads(vLB, vLBa, vLBp): f()
    for f in lat_unpack(vLA): f()
    interleave(lat_mfma(vLA), lat_unpack(vLB) + list(extra_fill[:12]), per=2)
    interleave(lat_mfma(vLB), list(extra_fill[12:]) + lat_store(vLA, vLAa), per=2, start=0)
    for f in lat_store(vLB, vLBa): f()
def lateral_single():
    for f in lat_reads(vLA, vLAa, vLAp): f()
    for f in lat_unpack(vLA): f()
    for f in lat_mfma(vLA): f()
    for f in lat_store(vLA, vLAa): f()

inited = set()
def conv_mfma(j, rp, dip, t, fr):
    o = rp - dip
    def f():
        first = (o, t) not in inited
        inited.add((o, t))
        e.mfma(acc(o, t), wreg(j, dip, t), ('v', fr), None if first else acc(o, t))
    return f
def frag_read(j, rp, fr):
    dj, s = divmod(j, 3)
    def f():
        e.ds_read(f"ds_read_b128 v[{fr}:{fr+3}], v{vROW+rp} offset:{dj*S + 64*s}", V(fr, 4), V(vROW+rp))
    return f
def epilogue_ops(o):
    ops = []
    a = vACC + 12*o
    for t in range(3):
        for d in range(2):
            def f(t=t, d=d):
                e.valu(f"v_cvt_pk_bf16_f32 v{a+4*t+d}, v{a+4*t+2*d}, v{a+4*t+2*d+1}", w=V(a+4*t+d), r=V(a+4*t+2*d, 2))
            ops.append(f)
    def st():
        def body():
            for t in range(3):
                if args.nostore: continue
                e.vmem(f"buffer_store_dwordx2 v[{a+4*t}:{a+4*t+1}], v{vOUT}, s[{SO}:{SO+3}], s{sOROW} offen offset:{32*t} {args.stflag}",
                       r=V(a+4*t, 2) + V(vOUT))
        if o == 0:
            e.salu(f"s_sub_u32 s{sT0}, s{sNR}, s{sG}")
            with Region(f"s_cmp_ge_u32 s{sT0}, 12"): body()
        else: body()
        e.salu(f"s_add_u32 s{sOROW}, s{sOROW}, s{sOSTEP}")
    ops.append(st)
    return ops

RA = 4
if args.mode != "full":
    for n in (32, 27, 22, 18, 16, 9, 4, 0):
        e.wait_vm(n); stamp(f"vmcnt{n}")
    e.raw("s_branch L_fin")
row_desc(vLAa, vLAp, 0)
row_desc(vLBa, vLBp, 11)
role_wait(27, None); stamp("wlat landed"); e.barrier()
for f in pull_ops(-1): f()
role_wait(18, None); stamp("c0 landed"); e.wait_for(pull_last_regs(-1)); e.barrier()
issue_chunk(3)
for f in pull_ops(0): f()
role_wait(18, 16); stamp("c1/b1 landed"); e.wait_for(pull_last_regs(0)); e.barrier()
issue_chunk(4)
lateral_pair(pull_ops(1))
with Region(f"s_cmp_eq_u32 s{sW}, 0"):
    edge_desc(vLAa, vLAp, 0)
    lateral_single()
row_desc(vLAa, vLAp, 4)
row_desc(vLBa, vLBp, 8)
with Region(f"s_cmp_eq_u32 s{sW}, 3"):
    edge_desc(vLBa, vLBp, 1)
role_wait(18, None); e.wait_lgkm0(); stamp("lat1 done/c2 landed"); e.barrier()

def frbuf(j, rp): return vFR + 16*(j % 2) + 4*rp
for rp in range(RA): frag_read(0, rp, frbuf(0, rp))()
for j in range(9):
    if j <= 3: issue_chunk(j + 5)
    main = []
    for rp in range(RA):
        for dip in range(3):
            if rp - dip < 0: continue
            for t in range(3): main.append(conv_mfma(j, rp, dip, t, frbuf(j, rp)))
    fill = []
    if j + 2 <= 8: fill += pull_ops(j + 2)
    if j + 1 <= 8: fill += [frag_read(j+1, rp, frbuf(j+1, rp)) for rp in range(RA)]
    interleave(main, fill, per=1)
    if j == 2:
        stamp("step2 mfma done")
        lateral_pair()
        stamp("lat2 done")
    if j + 2 <= 8 - 1 + 0 or j + 3 <= 8:
        pass
    if j + 3 <= 8:
        wn = 18 if j + 3 <= 6 else (9 if j + 3 == 7 else 0)
        inn = 0 if j == 1 else None
        role_wait(wn, inn)
        if j == 2: e.wait_lgkm0()
        else: e.wait_for(pull_last_regs(j + 2))
        stamp(f"step{j} end"); e.barrier()
stamp("phaseA end")

pend = epilogue_ops(0) + epilogue_ops(1)
seq = [(rp, j) for rp in (4, 5, 6) for j in range(9)]
NB = 8
def fb(n): return vFR + 4*(n % NB)
PF = 3
for n in range(PF): frag_read(seq[n][1], seq[n][0], fb(n))()
for n, (rp, j) in enumerate(seq):
    main = [conv_mfma(j, rp, dip, t, fb(n)) for dip in (2, 1, 0) for t in range(3)]
    fill = []
    if n + PF < len(seq): fill.append(frag_read(seq[n+PF][1], seq[n+PF][0], fb(n+PF)))
    take = pend[:8]; pend = pend[8:]
    interleave(main, fill + take, per=1, start=1)
    if j == 8: pend += epilogue_ops(rp - 2)
stamp("rows456 done")
JG = {0: [0, 1, 2, 3], 1: [4, 5, 6, 7, 8]}
for g in (0, 1):
    with Region(f"s_cmp_eq_u32 s{sG}, {g}"):
        for n, j in enumerate(JG[g]): frag_read(j, 7, fb(n))()
        for n, j in enumerate(JG[g]):
            for t in range(3): conv_mfma(j, 7, 1, t, fb(n))()
        if g == 1:
            e.salu(f"s_mul_i32 s{sT0}, s{sH}, 3072")
            e.valu(f"v_lshlrev_b32 v23, 4, v{vLANE}", w=V(23), r=V(vLANE))
            e.valu(f"v_add_u32 v23, s{sT0}, v23", w=V(23), r=V(23))
            for t in range(3):
                a = vACC + 72 + 4*t
                e.ds_write(f"ds_write_b128 v23, v[{a}:{a+3}] offset:{PB + 1024*t}", V(23) + V(a, 4))
for n in range(PF): frag_read(n, 7, fb(n))()
for j in range(9):
    main = [conv_mfma(j, 7, 2, t, fb(j)) for t in range(3)]
    fill = []
    if j + PF < 9: fill.append(frag_read(j+PF, 7, fb(j+PF)))
    take = pend[:3]; pend = pend[3:]
    interleave(main, fill + take, per=2, start=0)
for f in pend: f()
e.wait_lgkm0()
e.barrier()
for f in epilogue_ops(5): f()
with Region(f"s_cmp_eq_u32 s{sG}, 0"):
    e.salu(f"s_mul_i32 s{sT0}, s{sH}, 3072")
    e.valu(f"v_lshlrev_b32 v23, 4, v{vLANE}", w=V(23), r=V(vLANE))
    e.valu(f"v_add_u32 v23, s{sT0}, v23", w=V(23), r=V(23))
    for t in range(3):
        e.ds_read(f"ds_read_b128 v[{vFR+4*t}:{vFR+4*t+3}], v23 offset:{PB + 1024*t}", V(vFR+4*t, 4), V(23))
    for k in range(12):
        a = vACC + 72 + k
        e.valu(f"v_add_f32 v{a}, v{a}, v{vFR+k}", w=V(a), r=V(a) + V(vFR+k))
    for f in epilogue_ops(6): f()
e.label("L_fin")
stamp("end")
if args.stamps:
    e.raw("s_waitcnt vmcnt(0)")
    stamp("stores done")
    rtstamp("end")
    e.raw("s_waitcnt lgkmcnt(0)")
    e.salu(f"s_lshl_b32 s{sT0}, s2, 2")
    e.salu(f"s_add_u32 s{sT0}, s{sT0}, s{sW}")
    e.salu(f"s_lshl_b32 s{sT0}, s{sT0}, 8")
    e.salu("s_mov_b32 s20, s16"); e.salu("s_mov_b32 s21, s17"); e.salu("s_mov_b32 s22, 0x100000"); e.salu("s_mov_b32 s23, 0x20000")
    e.valu("v_mov_b32 v23, 0", w=V(23))
    e.raw("s_mov_b64 exec, 1")
    for k in range(nstamp[0]):
        e.valu(f"v_mov_b32 v24, s{sSTAMP+2*k}", w=V(24))
        e.valu(f"v_mov_b32 v25, s{sSTAMP+2*k+1}", w=V(25))
        e.vmem(f"buffer_store_dwordx2 v[24:25], v23, s[20:23], s{sT0} offen offset:{8*k}", r=V(23, 3))
        e.raw("s_nop 1")
if args.dbg:
    e.raw("s_waitcnt vmcnt(0)")
    e.raw("s_memtime s[64:65]")
    e.raw("s_memrealtime s[66:67]")
    e.raw("s_waitcnt lgkmcnt(0)")
    e.salu("s_sub_u32 s64, s64, s60")
    e.salu("s_sub_u32 s66, s66, s62")
    e.salu("s_mov_b32 s20, s16"); e.salu("s_mov_b32 s21, s17"); e.salu("s_mov_b32 s22, 256"); e.salu("s_mov_b32 s23, 0x20000")
    e.salu(f"s_cmp_lg_u32 s{sW}, 0")
    e.raw("s_cbranch_scc1 L_end")
    e.salu("s_cmp_ge_u32 s2, 6")
    e.raw("s_cbranch_scc1 L_dbg2")
    e.salu("s_lshl_b32 s47, s2, 3")
    e.valu("v_mov_b32 v23, 0", w=V(23))
    e.valu("v_mov_b32 v24, s64", w=V(24))
    e.valu("v_mov_b32 v25, s66", w=V(25))
    e.raw("s_mov_b64 exec, 1")
    e.vmem("buffer_store_dwordx2 v[24:25], v23, s[20:23], s47 offen", r=V(23,3))
    e.label("L_dbg2")
    e.raw("s_mov_b64 exec, 1")
    e.salu("s_add_u32 s66, s66, s62")
    e.salu("s_not_b32 s62, s62")
    e.valu("v_mov_b32 v23, 0", w=V(23))
    e.valu("v_mov_b32 v24, s66", w=V(24))
    e.valu("v_mov_b32 v25, s62", w=V(25))
    e.vmem("buffer_atomic_umax v24, v23, s[20:23], 0 offen offset:48", r=V(23,3))
    e.vmem("buffer_atomic_umax v25, v23, s[20:23], 0 offen offset:52", r=V(23,3))
e.label("L_end")
e.raw("s_endpgm")

out.append(e.text())
out.append('.section .rodata,"a"')
out.append(".p2align 6")
out.append(f".amdhsa_kernel {args.name}")
out.append("  .amdhsa_next_free_vgpr 512")
out.append("  .amdhsa_next_free_sgpr 102")
out.append("  .amdhsa_accum_offset 256")
out.append("  .amdhsa_group_segment_fixed_size 0")
out.append("  .amdhsa_kernarg_size 56")
out.append("  .amdhsa_user_sgpr_count 2")
out.append("  .amdhsa_user_sgpr_kernarg_segment_ptr 1")
out.append("  .amdhsa_system_sgpr_workgroup_id_x 1")
out.append(".end_amdhsa_kernel")
print("\n".join(out))
sys.stderr.write(f"nops={e.nops} waits={e.waits} stamps={nstamp[0]} lines={len(e.lines)}\n")
```

```python
def R(kind, base, n=1):
    return [(kind, base + i) for i in range(n)]
def rs(kind, base, n=1):
    return f"{kind}{base}" if n == 1 else f"{kind}[{base}:{base+n-1}]"

class Emit:
    def __init__(self):
        self.lines = []
        self.slot = 0
        self.lgkm = []
        self.mfma_w = {}
        self.mfma_wt = {}
        self.mfma_c = {}
        self.valu_w = {}
        self.valu_sw = {}
        self.store_r = {}
        self.m0_w = -100
        self.nops = 0
        self.waits = 0
    def _out(self, text, states=1):
        self.lines.append("    " + text)
        self.slot += states
    def comment(self, t): self.lines.append("    ; " + t)
    def label(self, t): self.lines.append(t + ":")
    def _pad_to(self, need_slot):
        while self.slot < need_slot:
            n = min(16, need_slot - self.slot)
            self._out(f"s_nop {n-1}", n)
            self.nops += n
    def _lgkm_for(self, regs):
        regs = set(regs)
        last = -1
        for i, d in enumerate(self.lgkm):
            if d & regs: last = i
        if last >= 0:
            n = len(self.lgkm) - 1 - last
            self._out(f"s_waitcnt lgkmcnt({n})")
            self.waits += 1
            self.lgkm = self.lgkm[last+1:]
    def wait_lgkm0(self):
        self._out("s_waitcnt lgkmcnt(0)")
        self.lgkm = []
    def wait_vm(self, n):
        self._out(f"s_waitcnt vmcnt({n})")
    def _need_mfma_w(self, regs, dist):
        need = 0
        for r in regs:
            if r in self.mfma_w: need = max(need, self.mfma_w[r] + 1 + dist)
        return need
    def mfma(self, D, A, B, C):
        d = R(D[0], D[1], 4); a = R(A[0], A[1], 4); b = R(B[0], B[1], 4)
        c = R(C[0], C[1], 4) if C is not None else []
        self._lgkm_for(d + a + b + c)
        need = 0
        for r in a + b + c:
            if r in self.valu_w: need = max(need, self.valu_w[r] + 1 + 2)
        need = max(need, self._need_mfma_w(a + b, 8))
        for r in c:
            if r in self.mfma_w and self.mfma_wt[r] != C:
                need = max(need, self.mfma_w[r] + 1 + 6)
        self._pad_to(need)
        cs = rs(C[0], C[1], 4) if C is not None else "0"
        s = self.slot
        self._out(f"v_mfma_f32_16x16x32_bf16 {rs(D[0],D[1],4)}, {rs(A[0],A[1],4)}, {rs(B[0],B[1],4)}, {cs}")
        for r in d:
            self.mfma_w[r] = s; self.mfma_wt[r] = D
            self.valu_w.pop(r, None)
        for r in c: self.mfma_c[r] = s
    def valu(self, text, w=(), r=(), sw=(), sr=(), perm=False, rfl=False):
        w = list(w); r = list(r)
        self._lgkm_for(w + r)
        need = self._need_mfma_w(w + r, 8)
        for x in w:
            if x in self.mfma_c: need = max(need, self.mfma_c[x] + 1 + 3)
            if x in self.store_r: need = max(need, self.store_r[x] + 1 + 2)
        for x in sr:
            if x in self.valu_sw: need = max(need, self.valu_sw[x] + 1 + 2)
        if perm:
            for x in r:
                if x in self.valu_w: need = max(need, self.valu_w[x] + 1 + 2)
        if rfl:
            for x in r:
                if x in self.valu_w: need = max(need, self.valu_w[x] + 1 + 1)
        self._pad_to(need)
        s = self.slot
        self._out(text)
        for x in w:
            self.valu_w[x] = s; self.mfma_w.pop(x, None)
        for x in sw: self.valu_sw[x] = s
    def salu(self, text, sr=(), m0=False):
        need = 0
        for x in sr:
            if x in self.valu_sw: need = max(need, self.valu_sw[x] + 1 + 4)
        self._pad_to(need)
        s = self.slot
        self._out(text)
        if m0: self.m0_w = s
    def ds_read(self, text, dst, addr):
        dst = list(dst)
        self._lgkm_for(dst + list(addr))
        need = self._need_mfma_w(dst + list(addr), 8)
        for x in dst:
            if x in self.store_r: need = max(need, self.store_r[x] + 1 + 2)
            if x in self.mfma_c: need = max(need, self.mfma_c[x] + 1 + 3)
        self._pad_to(need)
        if len(self.lgkm) >= 15:
            self._out(f"s_waitcnt lgkmcnt(14)"); self.lgkm = self.lgkm[len(self.lgkm)-14:]
        self._out(text)
        for x in dst:
            self.mfma_w.pop(x, None); self.valu_w.pop(x, None)
        self.lgkm.append(set(dst))
    def ds_write(self, text, src):
        src = list(src)
        self._lgkm_for(src)
        self._pad_to(self._need_mfma_w(src, 8))
        if len(self.lgkm) >= 15:
            self._out(f"s_waitcnt lgkmcnt(14)"); self.lgkm = self.lgkm[len(self.lgkm)-14:]
        self._out(text)
        self.lgkm.append(set())
    def vmem(self, text, r=(), sr=(), wide_data=(), dma=False):
        r = list(r)
        self._lgkm_for(r)
        need = self._need_mfma_w(r, 8)
        for x in sr:
            if x in self.valu_sw: need = max(need, self.valu_sw[x] + 1 + 5)
        if dma: need = max(need, self.m0_w + 1 + 1)
        self._pad_to(need)
        s = self.slot
        self._out(text)
        for x in wide_data: self.store_r[x] = s
    def raw(self, text, states=1):
        self._out(text, states)
    def barrier(self):
        self._out("s_barrier")
    def region_begin(self):
        self._rb = getattr(self, "_rb", [])
        snaps = [dict(d) for d in (self.mfma_w, self.mfma_c, self.valu_w, self.valu_sw, self.store_r)]
        self._rb.append((self.slot, list(self.lgkm), snaps, dict(self.mfma_wt)))
    def region_end(self, drain=True):
        s0, lg0, snaps, wt0 = self._rb.pop()
        if drain and self.lgkm != lg0[len(lg0)-len(self.lgkm):]:
            self.wait_lgkm0()
        shift = self.slot - s0
        for d, sn in zip((self.mfma_w, self.mfma_c, self.valu_w, self.valu_sw, self.store_r), snaps):
            for k in list(d.keys()):
                if d[k] >= s0: d[k] -= shift
            for k, v in sn.items():
                if k not in d or d[k] < v: d[k] = v
        for k, v in wt0.items():
            if self.mfma_wt.get(k) != v: self.mfma_wt[k] = ("?", -1)
        if self.m0_w >= s0: self.m0_w -= shift
        self.slot = s0
        self.lgkm = lg0
    def snapshot(self):
        return dict(slot=self.slot, lgkm=[set(x) for x in self.lgkm], m0=self.m0_w, wt=dict(self.mfma_wt),
                    d=[dict(d) for d in (self.mfma_w, self.mfma_c, self.valu_w, self.valu_sw, self.store_r)])
    def restore(self, st):
        self.slot = st["slot"]; self.lgkm = [set(x) for x in st["lgkm"]]; self.m0_w = st["m0"]; self.mfma_wt = dict(st["wt"])
        self.mfma_w, self.mfma_c, self.valu_w, self.valu_sw, self.store_r = [dict(d) for d in st["d"]]
    def merge(self, a, b):
        assert len(a["lgkm"]) == len(b["lgkm"]), (len(a["lgkm"]), len(b["lgkm"]))
        S = max(a["slot"], b["slot"])
        ds = []
        for da, db in zip(a["d"], b["d"]):
            m = {}
            for k, v in da.items(): m[k] = S - (a["slot"] - v)
            for k, v in db.items(): m[k] = max(m.get(k, -10**9), S - (b["slot"] - v))
            ds.append(m)
        wt = {}
        for k in set(a["wt"]) | set(b["wt"]):
            wt[k] = a["wt"].get(k) if a["wt"].get(k) == b["wt"].get(k) else ("?", -1)
        self.restore(dict(slot=S, lgkm=[x | y for x, y in zip(a["lgkm"], b["lgkm"])],
                          m0=max(S - (a["slot"] - a["m0"]), S - (b["slot"] - b["m0"])), wt=wt, d=ds))
    def vload(self, text, dst, r=(), sr=()):
        dst = list(dst); r = list(r)
        self._lgkm_for(dst + r)
        need = self._need_mfma_w(dst + r, 8)
        for x in sr:
            if x in self.valu_sw: need = max(need, self.valu_sw[x] + 1 + 5)
        self._pad_to(need)
        self._out(text)
        for x in dst:
            self.mfma_w.pop(x, None); self.valu_w.pop(x, None)
    def wait_for(self, regs):
        self._lgkm_for(regs)
    def text(self):
        return "\n".join(self.lines) + "\n"
```

```python
import sys, argparse
from emit import *

ap = argparse.ArgumentParser()
ap.add_argument("--stamps", action="store_true")
ap.add_argument("--name", default="standalone__detection_seg_fpn_lateral__vision_kernel")
ap.add_argument("--stflag", default="sc1")
ap.add_argument("--inflag", default="nt")
ap.add_argument("--nostore", action="store_true")
ap.add_argument("--pf", type=int, default=2)
ap.add_argument("--notouch", action="store_true")
ap.add_argument("--nobar", action="store_true")
args = ap.parse_args()

ROWB = 43008; CROWB = 21504
S = 224; MB = 0; MP = 16*S
PB = 16*MP + 512; PP = 2048
WB = PB + 9*PP; WS = 18432
LDS = WB + 4*WS
FINE_B = 9633792; COARSE_B = 2408448; WLAT_B = 18432; WOUT_B = 165888
INV = 0x40000000

SF, SP, SW0, SWO, SO = 20, 24, 28, 32, 36
sW, sX0, sY0, sTY, sG, sH = 40, 41, 42, 43, 45, 46
sT0, sT1, sT2, sT3 = 47, 48, 49, 50
sXO = 51
sM = 52
sWL = 54
sYG = 55
sPO = 56
sOROW = 57
sOSTEP = 58
sPOS = 59
sPL, sPLS = 14, 15
sWG = 18
sTCH = 19
sMG, sSG = 3, 2
sWGID = 101
sSTAMP = 60
vOUT2, vLANE, vM = 0, 1, 2
vROW = 3
vWE, vWO_ = 12, 15
vWL, vPL, vOUT = 18, 19, 20
vDW = 21
vT = 24
vXO, vDP = 30, 31
vFR = 32; NB = 8
vACC = 64
vLA = 148
vLa = 172
vLp = 176
WV = 184
vOR1, vOR2, vOG1, vOG2 = 180, 181, 182, 183
SS = 208; OP = 16*SS; OB = WB
XREG = [144, 216, 228, 240]

e = Emit()
V = lambda n, k=1: R('v', n, k)
nstamp = [0]
def stamp(tag, rt=False):
    if not args.stamps: return
    k = nstamp[0]; nstamp[0] += 1
    assert sSTAMP + 2*k + 1 < 101
    e.raw(f"{'s_memrealtime' if rt else 's_memtime'} s[{sSTAMP+2*k}:{sSTAMP+2*k+1}]")

def wreg(j, dip, t):
    idx = (dip*3 + t)*4
    if j < 7: return ('a', 36*j + idx)
    return ('v', WV + 36*(j-7) + idx)
def wlreg(t, s): return ('v', WV + (t*3 + s)*4)
def acc(o, t): return ('v', vACC + 12*o + 4*t)
def xreg(n, s): return ('a', XREG[n] + 4*s)

lab = [0]
def newlabel(p="L"):
    lab[0] += 1; return f"{p}_{lab[0]}"
class Region:
    def __init__(self, cmp, drain=True): self.cmp = cmp; self.drain = drain
    def __enter__(self):
        self.l = newlabel("Lskip")
        e.salu(self.cmp)
        e.raw(f"s_cbranch_scc0 {self.l}")
        e.region_begin()
    def __exit__(self, *a):
        e.region_end(self.drain)
        e.label(self.l)
def if_else(cmp, fa, fb_):
    le, lj = newlabel("Lelse"), newlabel("Ljoin")
    e.salu(cmp); e.raw(f"s_cbranch_scc0 {le}")
    s0 = e.snapshot()
    fa(); e.raw(f"s_branch {lj}")
    sa = e.snapshot(); e.restore(s0)
    e.label(le); fb_()
    sb = e.snapshot(); e.label(lj); e.merge(sa, sb)
vq = []
def vm_issue(tag): vq.append(tag)
def vm_wait(*tags):
    last = max(i for i, t in enumerate(vq) if t in tags)
    e.wait_vm(len(vq) - 1 - last)
def run(ops):
    for f in ops: f()
content = {}
def setc(regs, tag):
    for r in regs: content[r] = tag
def chk(regs, tag):
    for r in regs: assert content.get(r) == tag, (r, content.get(r), tag)

hdr = open("standalone__detection_seg_fpn_lateral__vision.s.ref").read().split("\n")
out = []
for l in hdr:
    if l.startswith("; @launch"): break
    out.append(l)
out.append(f"; @launch grid=(256,1,1) block=(256,1,1) lds={LDS}")
out.append('.amdgcn_target "amdgcn-amd-amdhsa--gfx950"')
out.append(".text")
out.append(f".globl {args.name}")
out.append(".p2align 8")
out.append(f".type {args.name},@function")
out.append(f"{args.name}:")

stamp("start"); stamp("start", rt=True)
e.salu("s_cmp_ge_u32 s2, 256")
e.raw("s_cbranch_scc1 L_end")
e.raw("s_load_dwordx8 s[4:11], s[0:1], 0")
e.raw("s_load_dwordx2 s[12:13], s[0:1], 32")
if args.stamps:
    e.raw("s_load_dwordx2 s[16:17], s[0:1], 48")
    e.salu(f"s_mov_b32 s{sWGID}, s2")
e.valu("v_lshrrev_b32 v24, 6, v0", w=V(24), r=V(0))
e.valu(f"v_and_b32 v{vLANE}, 63, v0", w=V(vLANE), r=V(0))
e.valu(f"v_readfirstlane_b32 s{sW}, v24", r=V(24), sw=[sW], rfl=True)
e.salu(f"s_and_b32 s{sT0}, s2, 7")
e.salu(f"s_lshr_b32 s{sT1}, s2, 3")
e.salu(f"s_mul_i32 s{sTCH}, s{sT1}, {41*128}")
e.salu(f"s_and_b32 s{sT2}, s{sT0}, 1")
e.salu(f"s_lshl_b32 s{sT2}, s{sT2}, 3")
e.salu(f"s_and_b32 s{sT3}, s{sT1}, 7")
e.salu(f"s_add_u32 s{sTY}, s{sT2}, s{sT3}")
e.salu(f"s_lshr_b32 s{sT2}, s{sT0}, 1")
e.salu(f"s_lshl_b32 s{sT2}, s{sT2}, 2")
e.salu(f"s_lshr_b32 s{sT3}, s{sT1}, 3")
e.salu(f"s_add_u32 s{sT2}, s{sT2}, s{sT3}")
e.salu(f"s_mul_i32 s{sX0}, s{sT2}, 14")
e.salu(f"s_mul_i32 s{sY0}, s{sTY}, 14")
e.salu(f"s_lshr_b32 s{sG}, s{sW}, 1", sr=[sW])
e.salu(f"s_and_b32 s{sH}, s{sW}, 1")
e.salu(f"s_mul_i32 s{sSG}, s{sG}, -2")
e.salu(f"s_add_u32 s{sSG}, s{sSG}, 1")
e.salu(f"s_mul_i32 s{sYG}, s{sG}, 15")
e.salu(f"s_add_u32 s{sYG}, s{sYG}, s{sY0}")
e.salu(f"s_sub_u32 s{sYG}, s{sYG}, 1")
e.salu(f"s_lshr_b32 s{sT0}, s{sY0}, 1")
e.salu(f"s_lshl_b32 s{sT1}, s{sG}, 3")
e.salu(f"s_add_u32 s{sT0}, s{sT0}, s{sT1}")
e.salu(f"s_sub_u32 s{sT0}, s{sT0}, 1")
e.salu(f"s_mul_i32 s{sPO}, s{sT0}, {CROWB}")
e.salu(f"s_mul_i32 s{sPOS}, s{sSG}, {CROWB}")
e.salu(f"s_lshl_b32 s{sPLS}, s{sSG}, 11")
e.salu(f"s_lshl_b32 s{sPL}, s{sG}, 14")
e.salu(f"s_lshl_b32 s{sT1}, s{sH}, 10")
e.salu(f"s_add_u32 s{sPL}, s{sPL}, s{sT1}")
e.salu(f"s_add_u32 s{sPL}, s{sPL}, {PB}")
e.valu(f"v_mov_b32 v29, {INV:#x}", w=V(29))
vD0 = vFR
e.valu(f"v_lshlrev_b32 v{vD0}, 4, v{vLANE}", w=V(vD0), r=V(vLANE))
e.valu(f"v_and_b32 v25, 32, v{vLANE}", w=V(25), r=V(vLANE))
e.valu(f"v_xor_b32 v{vD0+1}, v25, v{vD0}", w=V(vD0+1), r=V(25)+V(vD0))
e.valu(f"v_xor_b32 v{vD0+2}, 32, v{vD0}", w=V(vD0+2), r=V(vD0))
e.valu(f"v_lshlrev_b32 v{vD0+4}, 7, v{vLANE}", w=V(vD0+4), r=V(vLANE))
e.salu(f"s_sub_u32 s{sT1}, s{sX0}, 1")
e.valu(f"v_and_b32 v24, 15, v{vLANE}", w=V(24), r=V(vLANE))
e.valu(f"v_lshrrev_b32 v25, 4, v{vLANE}", w=V(25), r=V(vLANE))
e.valu(f"v_add_u32 v27, s{sT1}, v24", w=V(27), r=V(24))
e.valu("v_cmp_gt_u32 vcc, 224, v27", r=V(27), sw=["vcc"])
e.valu("v_mul_u32_u24 v28, 192, v27", w=V(28), r=V(27))
e.valu("v_lshl_add_u32 v28, v25, 4, v28", w=V(28), r=V(25)+V(28))
e.valu(f"v_cndmask_b32 v{vXO}, v29, v28, vcc", w=V(vXO), r=V(29)+V(28), sr=["vcc"])
e.salu(f"s_lshr_b32 s{sT1}, s{sX0}, 1")
e.salu(f"s_sub_u32 s{sT1}, s{sT1}, 1")
e.valu("v_and_b32 v26, 127, v0", w=V(26), r=V(0))
e.valu("v_mul_u32_u24 v27, 5462, v26", w=V(27), r=V(26))
e.valu("v_lshrrev_b32 v27, 16, v27", w=V(27), r=V(27))
e.valu(f"v_cmp_gt_u32 s[{sM}:{sM+1}], 9, v27", r=V(27), sw=[sM])
e.valu("v_mul_u32_u24 v28, 12, v27", w=V(28), r=V(27))
e.valu("v_sub_u32 v26, v26, v28", w=V(26), r=V(26)+V(28))
e.valu(f"v_add_u32 v27, s{sT1}, v27", w=V(27), r=V(27))
e.valu("v_cmp_gt_u32 vcc, 112, v27", r=V(27), sw=["vcc"])
e.valu("v_mul_u32_u24 v28, 192, v27", w=V(28), r=V(27))
e.valu("v_lshl_add_u32 v28, v26, 4, v28", w=V(28), r=V(26)+V(28))
e.valu(f"v_cndmask_b32 v28, v29, v28, vcc", w=V(28), r=V(29)+V(28), sr=["vcc"])
e.valu(f"v_cndmask_b32 v{vDP}, v29, v28, s[{sM}:{sM+1}]", w=V(vDP), r=V(29)+V(28), sr=[sM])
for srd, nb in ((SF, FINE_B), (SP, COARSE_B), (SW0, WLAT_B), (SWO, WOUT_B), (SO, FINE_B)):
    e.salu(f"s_mov_b32 s{srd+2}, {nb}")
    e.salu(f"s_mov_b32 s{srd+3}, 0x20000")
e.salu(f"s_mul_i32 s{sT3}, s{sW}, 6144")
e.raw("s_waitcnt lgkmcnt(0)")
for srd, p in ((SW0, 8), (SWO, 10), (SF, 4), (SP, 6), (SO, 12)):
    e.salu(f"s_mov_b32 s{srd}, s{p}")
    e.salu(f"s_mov_b32 s{srd+1}, s{p+1}")

GSLOT = {0: 2, 1: 0, 2: 2, 3: 0, 4: 3}
def slot_of(j): return 0 if j < 0 else GSLOT[j // 2] + (j % 2)
def group_ops(G):
    ops = []
    cnt = G < 4
    for blk in range(3):
        def f(blk=blk):
            e.salu(f"s_add_u32 m0, s{sWL}, {GSLOT[G]*WS + blk*6144}", m0=True)
            e.salu(f"s_add_u32 s{sT2}, s{sWG}, {2*G*6144 + blk*55296}")
            e.vmem(f"buffer_load_dwordx4 v{vDW}, s[{SWO}:{SWO+3}], s{sT2} offen lds", r=V(vDW), dma=True)
            if cnt: vm_issue(f"G{G}")
        ops.append(f)
        for p in (1, 2):
            def f(p=p):
                e.vmem(f"buffer_load_dwordx4 v{vDW+p}, s[{SWO}:{SWO+3}], s{sT2} offen offset:{1024*p} lds", r=V(vDW+p), dma=True)
                if cnt: vm_issue(f"G{G}")
            ops.append(f)
    return ops
def p_ops(crp, tag):
    def f():
        if crp == 0:
            e.salu(f"s_mov_b32 m0, s{sPL}", m0=True)
            e.salu(f"s_mul_i32 s{sT1}, s{sG}, 15")
            e.salu(f"s_cmp_eq_u32 s{sTY}, s{sT1}")
            e.salu(f"s_cselect_b32 s{SP+2}, 0, {COARSE_B}")
            e.salu(f"s_cselect_b32 s{sT0}, 0, s{sPO}")
        else:
            e.salu(f"s_mul_i32 s{sT1}, s{sPLS}, {crp}")
            e.salu(f"s_add_u32 m0, s{sPL}, s{sT1}", m0=True)
            e.salu(f"s_mul_i32 s{sT0}, s{sPOS}, {crp}")
            e.salu(f"s_add_u32 s{sT0}, s{sT0}, s{sPO}")
        e.vmem(f"buffer_load_dwordx4 v{vDP}, s[{SP}:{SP+3}], s{sT0} offen {args.inflag} lds", r=V(vDP), dma=True)
        vm_issue(tag)
        if crp == 0: e.salu(f"s_mov_b32 s{SP+2}, {COARSE_B}")
    return [f]
RB = [3, 5, 1, 7]; RH = [1, 1, 1, -7]
def x_ops(n):
    ops = []
    for s in range(3):
        def f(s=s):
            if s == 0:
                e.salu(f"s_mul_i32 s{sXO}, s{sH}, {RH[n]}")
                e.salu(f"s_add_u32 s{sXO}, s{sXO}, {RB[n]}")
                e.salu(f"s_mul_i32 s{sXO}, s{sXO}, s{sSG}")
                e.salu(f"s_add_u32 s{sXO}, s{sXO}, s{sYG}")
                if n == 3:
                    e.salu(f"s_cmp_ge_u32 s{sXO}, 224")
                    e.salu(f"s_cselect_b32 s{SF+2}, 0, {FINE_B}")
                    e.salu(f"s_cselect_b32 s{sXO}, 0, s{sXO}")
                e.salu(f"s_mul_i32 s{sXO}, s{sXO}, {ROWB}")
            k, r0 = xreg(n, s)
            e.vload(f"buffer_load_dwordx4 {rs(k, r0, 4)}, v{vXO}, s[{SF}:{SF+3}], s{sXO} offen offset:{64*s} {args.inflag}", R(k, r0, 4), r=V(vXO))
            vm_issue(f"X{n}"); setc(R(k, r0, 4), ("x", n))
        ops.append(f)
    return ops

stamp("dma-begin")
def w1_a():
    for half in range(2):
        e.salu(f"s_add_u32 m0, s{sT3}, {WB + half*3072}", m0=True)
        e.salu(f"s_add_u32 s{sT2}, s{sT3}, {half*3072}")
        for p in range(3):
            e.vmem(f"buffer_load_dwordx4 v{vD0+p}, s[{SW0}:{SW0+3}], s{sT2} offen offset:{1024*p} lds", r=V(vD0+p), dma=True)
def w1_b():
    if not args.notouch:
        e.salu("s_mov_b32 exec_hi, 0x1ff")
        e.vload(f"buffer_load_dword v{vD0+5}, v{vD0+4}, s[{SWO}:{SWO+3}], s{sTCH} offen", V(vD0+5), r=V(vD0+4))
        e.salu("s_mov_b32 exec_hi, -1")
if_else(f"s_cmp_lt_u32 s{sW}, 3", w1_a, w1_b)
vm_issue("WL")
run(p_ops(2, "PA") + x_ops(0) + p_ops(3, "PB"))
pass

e.salu(f"s_mul_i32 s{sT3}, s{sH}, 3072")
for p in range(3):
    e.valu(f"v_add_u32 v{vDW+p}, s{sT3}, v{vD0+p}", w=V(vDW+p), r=V(vD0+p))
e.salu(f"s_mul_i32 s{sWG}, s{sG}, 6144")
e.salu(f"s_mul_i32 s{sWL}, s{sG}, {WS}")
e.salu(f"s_add_u32 s{sWL}, s{sWL}, s{sT3}")
e.salu(f"s_add_u32 s{sWL}, s{sWL}, {WB}")
g0 = group_ops(0)
run(g0[:3])
e.valu("v_lshrrev_b32 v26, 2, v24", w=V(26), r=V(24))
e.valu("v_lshl_add_u32 v26, v25, 3, v26", w=V(26), r=V(25)+V(26))
e.valu("v_mul_u32_u24 v26, 192, v26", w=V(26), r=V(26))
e.valu(f"v_and_b32 v27, 3, v{vLANE}", w=V(27), r=V(vLANE))
e.valu("v_and_b32 v28, 1, v25", w=V(28), r=V(25))
e.valu("v_lshlrev_b32 v28, 5, v28", w=V(28), r=V(28))
e.valu(f"v_lshlrev_b32 v{vWL}, 4, v27", w=V(vWL), r=V(27))
e.valu(f"v_xor_b32 v{vWL}, v{vWL}, v28", w=V(vWL), r=V(vWL)+V(28))
e.valu(f"v_add_u32 v{vWL}, v{vWL}, v26", w=V(vWL), r=V(vWL)+V(26))
e.valu(f"v_add_u32 v{vWL}, {WB}, v{vWL}", w=V(vWL), r=V(vWL))
e.valu("v_lshl_add_u32 v26, v27, 3, v26", w=V(26), r=V(27)+V(26))
e.salu(f"s_mul_i32 s{sT0}, s{sH}, 96")
e.salu(f"s_add_u32 s{sT0}, s{sT0}, {WB}")
e.valu(f"v_add_u32 v26, s{sT0}, v26", w=V(26), r=V(26))
e.salu(f"s_mul_i32 s{sT0}, s{sH}, -2")
e.salu(f"s_add_u32 s{sT0}, s{sT0}, 1")
e.valu(f"v_mul_i32_i24 v28, s{sT0}, v28", w=V(28), r=V(28))
e.valu("v_add_u32 v27, v26, v28", w=V(27), r=V(26)+V(28))
e.valu("v_sub_u32 v26, v26, v28", w=V(26), r=V(26)+V(28))
e.salu(f"s_mul_i32 s{sT0}, s{sG}, 12288")
e.salu(f"s_sub_u32 s{sT1}, 12288, s{sT0}")
e.valu(f"v_add_u32 v{vWE}, s{sT0}, v27", w=V(vWE), r=V(27))
e.valu(f"v_add_u32 v{vWE+1}, 6144, v27", w=V(vWE+1), r=V(27))
e.valu(f"v_add_u32 v{vWE+2}, s{sT1}, v27", w=V(vWE+2), r=V(27))
e.valu(f"v_add_u32 v{vWO_}, s{sT0}, v26", w=V(vWO_), r=V(26))
e.valu(f"v_add_u32 v{vWO_+1}, 6144, v26", w=V(vWO_+1), r=V(26))
e.valu(f"v_add_u32 v{vWO_+2}, s{sT1}, v26", w=V(vWO_+2), r=V(26))
e.valu(f"v_mul_u32_u24 v{vM}, {S}, v24", w=V(vM), r=V(24))
e.valu(f"v_lshl_add_u32 v{vM}, v25, 4, v{vM}", w=V(vM), r=V(25)+V(vM))
e.salu(f"s_mul_i32 s{sMG}, s{sG}, {15*MP}")
e.salu(f"s_mul_i32 s{sT1}, s{sSG}, {MP}")
e.valu(f"v_add_u32 v{vROW}, s{sMG}, v{vM}", w=V(vROW), r=V(vM))
for k in range(1, 9):
    e.valu(f"v_add_u32 v{vROW+k}, s{sT1}, v{vROW+k-1}", w=V(vROW+k), r=V(vROW+k-1))
e.salu(f"s_cmp_eq_u32 s{sH}, 1")
e.salu(f"s_cselect_b64 s[{sM}:{sM+1}], -1, 0")
for n in range(4):
    e.valu(f"v_cndmask_b32 v{vLa+n}, v{vROW+RB[n]}, v{vROW+RB[n]+RH[n]}, s[{sM}:{sM+1}]", w=V(vLa+n), r=V(vROW+RB[n])+V(vROW+RB[n]+RH[n]))
e.valu("v_add_u32 v26, 1, v24", w=V(26), r=V(24))
e.valu("v_lshrrev_b32 v26, 1, v26", w=V(26), r=V(26))
e.valu("v_mul_u32_u24 v26, 192, v26", w=V(26), r=V(26))
e.valu(f"v_lshl_add_u32 v26, v25, 4, v26", w=V(26), r=V(25)+V(26))
e.salu(f"s_lshl_b32 s{sT0}, s{sG}, 14")
e.salu(f"s_add_u32 s{sT0}, s{sT0}, {PB}")
e.valu(f"v_add_u32 v{vPL}, s{sT0}, v26", w=V(vPL), r=V(26))
for n, crp in enumerate((2, 3, 1)):
    e.salu(f"s_mul_i32 s{sT0}, s{sPLS}, {crp}")
    e.valu(f"v_add_u32 v{vLp+n}, s{sT0}, v{vPL}", w=V(vLp+n), r=V(vPL))
e.salu(f"s_mul_i32 s{sT0}, s{sPLS}, 4")
e.salu(f"s_cmp_eq_u32 s{sH}, 1")
e.salu(f"s_cselect_b32 s{sT0}, 0, s{sT0}")
e.valu(f"v_add_u32 v{vLp+3}, s{sT0}, v{vPL}", w=V(vLp+3), r=V(vPL))
e.valu(f"v_mul_u32_u24 v26, {SS}, v24", w=V(26), r=V(24))
e.salu(f"s_mul_i32 s{sT0}, s{sH}, 96")
e.salu(f"s_mul_i32 s{sT1}, s{sG}, {7*OP}")
e.salu(f"s_add_u32 s{sT1}, s{sT1}, {OB}")
e.salu(f"s_add_u32 s{sT0}, s{sT0}, s{sT1}")
e.valu(f"v_add_u32 v26, s{sT0}, v26", w=V(26), r=V(26))
e.valu("v_and_b32 v27, 1, v25", w=V(27), r=V(25))
e.valu("v_lshrrev_b32 v28, 1, v25", w=V(28), r=V(25))
e.valu(f"v_lshl_add_u32 v{vOUT}, v25, 3, v26", w=V(vOUT), r=V(25)+V(26))
e.valu("v_lshl_add_u32 v26, v27, 5, v26", w=V(26), r=V(27)+V(26))
e.valu(f"v_lshl_add_u32 v{vOUT2}, v28, 4, v26", w=V(vOUT2), r=V(28)+V(26))
e.salu(f"s_lshl_b32 s{sT0}, s{sH}, 6")
e.salu(f"s_mul_i32 s{sT2}, s{sH}, 24")
e.salu(f"s_add_u32 s{sT2}, s{sT2}, 128")
e.salu(f"s_mul_i32 s{sT3}, s{sX0}, 192")
for (sn, vr, vg) in ((sT0, vOR1, vOG1), (sT2, vOR2, vOG2)):
    e.valu(f"v_add_u32 v26, s{sn}, v{vLANE}", w=V(26), r=V(vLANE))
    e.valu("v_mul_u32_u24 v27, 5462, v26", w=V(27), r=V(26))
    e.valu("v_lshrrev_b32 v27, 16, v27", w=V(27), r=V(27))
    e.valu("v_lshlrev_b32 v26, 4, v26", w=V(26), r=V(26))
    e.valu(f"v_lshl_add_u32 v27, v27, 4, v26", w=V(27), r=V(27)+V(26))
    e.valu(f"v_add_u32 v{vr}, s{sT1}, v27", w=V(vr), r=V(27))
    e.valu(f"v_add_u32 v{vg}, s{sT3}, v26", w=V(vg), r=V(26))
e.salu(f"s_lshl_b32 s{sT0}, s{sH}, 3")
e.salu(f"s_sub_u32 s{sT0}, 24, s{sT0}")
e.valu(f"v_cmp_gt_u32 vcc, s{sT0}, v{vLANE}", r=V(vLANE), sw=["vcc"])
e.valu(f"v_cndmask_b32 v{vOG2}, v29, v{vOG2}, vcc", w=V(vOG2), r=V(29)+V(vOG2), sr=["vcc"])
e.valu(f"v_cndmask_b32 v{vOR2}, v{vOR1}, v{vOR2}, vcc", w=V(vOR2), r=V(vOR1)+V(vOR2), sr=["vcc"])
e.salu(f"s_mul_i32 s{sT0}, s{sG}, 13")
e.salu(f"s_add_u32 s{sT0}, s{sT0}, s{sY0}")
e.salu(f"s_mul_i32 s{sOROW}, s{sT0}, {ROWB}")
e.salu(f"s_mul_i32 s{sOSTEP}, s{sSG}, {ROWB}")

def pull_ops(j, order=(2, 1, 0)):
    slot = slot_of(j)
    ops = []
    if j < 0:
        for s in range(3):
            for t in range(6):
                for hh in range(2):
                    k, b = wlreg(t, s)
                    off = slot*WS + s*6144 + hh*768 + 64*(t >> 1) + 8*(t & 1)
                    def f(k=k, b=b, off=off, hh=hh):
                        e.ds_read(f"ds_read_b64_tr_b16 {rs(k, b+2*hh, 2)}, v{vWL} offset:{off}", R(k, b+2*hh, 2), V(vWL))
                        setc(R(k, b+2*hh, 2), "wl")
                    ops.append(f)
    else:
        for dip in order:
            for t in range(3):
                for hh in range(2):
                    k, b = wreg(j, dip, t)
                    va = (vWE if t % 2 == 0 else vWO_) + dip
                    off = slot*WS + hh*768 + 32*t
                    def f(k=k, b=b, off=off, hh=hh, va=va):
                        e.ds_read(f"ds_read_b64_tr_b16 {rs(k, b+2*hh, 2)}, v{va} offset:{off}", R(k, b+2*hh, 2), V(va))
                        setc(R(k, b+2*hh, 2), ("w", j))
                    ops.append(f)
    return ops
def pull_last(j): return R(*wreg(j, 0, 2), 4)

def mix(a, b):
    if not a: return list(b)
    if not b: return list(a)
    res = []; bi = 0
    for n, x in enumerate(a):
        res.append(x)
        tgt = ((n + 1) * len(b)) // len(a)
        while bi < tgt: res.append(b[bi]); bi += 1
    return res + list(b[bi:])
NOP = lambda: None
def pad(ops, n): return list(ops) + [NOP] * max(0, n - len(ops))
def seg(main, fill):
    nm, nf = len(main), len(fill)
    fi = 0
    for n, m in enumerate(main):
        m()
        tgt = -(-(n + 1) * nf // nm) if nm else nf
        while fi < min(tgt, nf): fill[fi](); fi += 1
    while fi < nf: fill[fi](); fi += 1

vLB = 124
LSET = [vLA, vLA, vLA, vLA]
def lat_reads(n):
    A = LSET[n]
    ops = []
    for u in range(3):
        def f(u=u):
            e.ds_read(f"ds_read_b128 v[{A+8*u+4}:{A+8*u+7}], v{vLp+n} offset:{64*u}", V(A+8*u+4, 4), V(vLp+n))
            setc(V(A+8*u+4, 4), ("p", n))
        ops.append(f)
    return ops
def lat_unpack(n):
    A = LSET[n]
    ops = []
    for u in range(3):
        a = A + 8*u
        sq = [(a+0, a+4, 0), (a+1, a+4, 1), (a+2, a+5, 0), (a+3, a+5, 1),
              (a+4, a+6, 0), (a+5, a+6, 1), (a+6, a+7, 0), (a+7, a+7, 1)]
        for (d, s_, hi) in sq:
            def f(d=d, s_=s_, hi=hi):
                assert content[('v', s_)][0] == "p"
                tg = ("pu", content[('v', s_)][1])
                content[('v', d)] = tg
                if hi: e.valu(f"v_and_b32 v{d}, 0xffff0000, v{s_}", w=V(d), r=V(s_))
                else:  e.valu(f"v_lshlrev_b32 v{d}, 16, v{s_}", w=V(d), r=V(s_))
            ops.append(f)
    return ops
def lat_mfma(n, umajor=False):
    A = LSET[n]
    ops = []
    order = [(s, t) for u in range(3) for s in range(3) for t in (2*u, 2*u+1)] if umajor else [(s, t) for s in range(3) for t in range(6)]
    for (s, t) in order:
        def f(s=s, t=t):
            chk(R(*wlreg(t, s), 4), "wl"); chk(R(*xreg(n, s), 4), ("x", n)); chk(V(A+4*t, 4), ("pu", n))
            e.mfma(('v', A+4*t), wlreg(t, s), xreg(n, s), ('v', A+4*t))
        ops.append(f)
    return ops
def lat_store(n):
    A = LSET[n]
    ops = []
    for u in range(3):
        for d in range(4):
            def f(u=u, d=d):
                e.valu(f"v_cvt_pk_bf16_f32 v{A+8*u+d}, v{A+8*u+2*d}, v{A+8*u+2*d+1}", w=V(A+8*u+d), r=V(A+8*u+2*d, 2))
            ops.append(f)
        def f(u=u): e.ds_write(f"ds_write_b128 v{vLa+n}, v[{A+8*u}:{A+8*u+3}] offset:{64*u}", V(vLa+n) + V(A+8*u, 4))
        ops.append(f)
    return ops

inited = set(); done = set()
def conv_mfma(j, rp, dip, t, fr):
    o = rp - dip
    def f():
        first = (o, t) not in inited
        inited.add((o, t))
        chk(R(*wreg(j, dip, t), 4), ("w", j)); chk(V(fr, 4), ("f", rp, j))
        done.add((rp, j, dip, t))
        e.mfma(acc(o, t), wreg(j, dip, t), ('v', fr), None if first else acc(o, t))
    return f
def frag_read(j, rp, fr):
    dj, s = divmod(j, 3)
    def f():
        e.ds_read(f"ds_read_b128 v[{fr}:{fr+3}], v{vROW+rp} offset:{dj*S + 64*s}", V(fr, 4), V(vROW+rp))
        setc(V(fr, 4), ("f", rp, j))
    return f
def epilogue_ops(o):
    ops = []
    a = vACC + 12*o
    cv = [(a+0, a+0), (a+1, a+2), (a+2, a+4), (a+3, a+6), (a+8, a+8), (a+9, a+10)]
    for (d, s_) in cv:
        def f(d=d, s_=s_):
            assert all((o+dp, j, dp, t) in done for dp in range(3) for j in range(9) for t in range(3)), o
            e.valu(f"v_cvt_pk_bf16_f32 v{d}, v{s_}, v{s_+1}", w=V(d), r=V(s_, 2))
        ops.append(f)
    for d in range(2):
        def f(d=d):
            e.valu(f"v_permlane16_swap_b32 v{a+d}, v{a+2+d}", w=V(a+d)+V(a+2+d), r=V(a+d)+V(a+2+d), perm=True)
        ops.append(f)
    ops.append(lambda: e.ds_write(f"ds_write_b64 v{vOUT}, v[{a+8}:{a+9}] offset:{o*OP + 64}", V(a+8, 2) + V(vOUT)))
    ops.append(lambda: e.ds_write(f"ds_write_b128 v{vOUT2}, v[{a}:{a+3}] offset:{o*OP}", V(a, 4) + V(vOUT2)))
    return ops
def store_ops(o):
    a = vACC + 12*o
    ops = []
    ops.append(lambda: e.ds_read(f"ds_read_b128 v[{a}:{a+3}], v{vOR1} offset:{o*OP}", V(a, 4), V(vOR1)))
    ops.append(lambda: e.ds_read(f"ds_read_b128 v[{a+4}:{a+7}], v{vOR2} offset:{o*OP}", V(a+4, 4), V(vOR2)))
    def so():
        e.salu(f"s_mul_i32 s{sT3}, s{sOSTEP}, {o}")
        e.salu(f"s_add_u32 s{sT3}, s{sT3}, s{sOROW}")
    ops += [so, NOP, NOP, NOP, NOP]
    if not args.nostore:
        ops.append(lambda: e.vmem(f"buffer_store_dwordx4 v[{a}:{a+3}], v{vOG1}, s[{SO}:{SO+3}], s{sT3} offen {args.stflag}",
                                  r=V(a, 4) + V(vOG1), wide_data=V(a, 4)))
        ops.append(NOP)
        ops.append(lambda: e.vmem(f"buffer_store_dwordx4 v[{a+4}:{a+7}], v{vOG2}, s[{SO}:{SO+3}], s{sT3} offen {args.stflag}",
                                  r=V(a+4, 4) + V(vOG2), wide_data=V(a+4, 4)))
    return ops
wq = []
def wait_writes():
    last = -1
    for i, d in enumerate(e.lgkm):
        if not d: last = i
    if last >= 0:
        n = len(e.lgkm) - 1 - last
        e.raw(f"s_waitcnt lgkmcnt({n})"); e.lgkm = e.lgkm[last+1:]

def dips_of(rp): return [d for d in (2, 1, 0) if 0 <= rp - d <= 6]
vis_row = {3: 2, 4: 2, 5: 3, 6: 3, 1: 4, 2: 4, 0: 5, 7: 5, 8: 5}
items = []
groups = {}
def add(name, rps, js, rowmajor=False):
    g = groups.setdefault(name, [])
    lst = [(rp, j) for rp in rps for j in js] if rowmajor else [(rp, j) for j in js for rp in rps]
    for rp, j in lst:
        g.append(len(items)); items.append((rp, j))
RA_, RB_, RC_, RD_ = (3, 4), (5, 6), (2, 1), (7, 8, 0)
add("2a", RA_, (0,)); add("2b", (3,), (1,)); add("2c", (4,), (1,))
add("3a", RB_, (0,)); add("3b", RB_, (1,)); add("3c", RA_, (2,))
add("4a", RB_, (2,)); add("4b", RA_, (3,))
add("5a", RB_, (3,)); add("5b", RC_, (0,))
add("6a", RC_, (1,)); add("6b", RC_, (2, 3)); add("6b", RD_, (0,)); add("6c", RD_, (1, 2, 3))
add("7a", (0, 1), (4, 5, 6, 7), rowmajor=True)
add("8_2a", (2,), (4, 5)); add("8_2b", (2,), (6, 7)); add("8_2c", (0, 1, 2), (8,))
for r in range(3, 9): add(f"8_{r}", (r,), (4, 5, 6, 7, 8))
assert sorted(items) == sorted((r, j) for r in range(9) for j in range(9))
fr_done = set()
PF = args.pf
def fb(n): return vFR + 4*(n % NB)
def item_main(n):
    rp, j = items[n]
    return [conv_mfma(j, rp, dip, t, fb(n)) for dip in dips_of(rp) for t in range(3)]
def prefetch_ops(n, step, depth=None):
    ops = []
    ahead = 0
    lim = 9*(PF if depth is None else depth)
    for m in range(n, min(n + NB - 1, len(items))):
        rp, j = items[m]
        if m > n and ahead >= lim + 1: break
        if m not in fr_done:
            if vis_row[rp] > step: break
            fr_done.add(m); ops.append(frag_read(j, rp, fb(m)))
        ahead += 3*len(dips_of(rp))
    return ops
def conv_seg(names, step, fill, depth=None):
    idx = [n for nm_ in names for n in groups[nm_]]
    main = []; mk = {}
    for n in idx:
        assert vis_row[items[n][0]] <= step
        mk[len(main)] = n; main += item_main(n)
    nm, nf = len(main), len(fill)
    fi = 0
    for p, m in enumerate(main):
        if p in mk:
            n = mk[p]
            if n not in fr_done: run(prefetch_ops(n, step, 0)[:1])
            m(); run(prefetch_ops(n, step, depth))
        else: m()
        tgt = -(-(p + 1) * nf // nm)
        while fi < min(tgt, nf): fill[fi](); fi += 1
    while fi < nf: fill[fi](); fi += 1

vm_wait("WL"); stamp("B0 wait done"); e.barrier()
run(mix(pull_ops(-1), g0[3:]))
pass
vm_wait("PA"); e.wait_lgkm0(); stamp("B1 wait done"); e.barrier()
run(lat_reads(0))
run(x_ops(1))
run(lat_unpack(0))
vm_wait("X0"); stamp("X0 landed")
lm = lat_mfma(0, umajor=True); ls = lat_store(0); g1 = group_ops(1)
seg(lm[:9], g1[:3])
seg(lm[9:15], ls[:5])
seg(lm[15:], ls[5:10])
run(ls[10:])
vm_wait("G0"); e.wait_lgkm0(); stamp("S1 end"); e.barrier()
p0 = pull_ops(0); p1 = pull_ops(1); u1 = lat_unpack(1)
run(prefetch_ops(groups["2a"][0], 2, 1)); run(p0[:6])
m2 = [conv_mfma(0, items[n][0], d, t, fb(n)) for d in (2, 1, 0) for n in groups["2a"] for t in range(3)]
seg(m2[:6], p0[6:])
seg(m2[6:], mix(lat_reads(1) + prefetch_ops(groups["2b"][0], 2, 1) + p1[:12], g1[3:6]))
seg(item_main(groups["2b"][0])[:6], mix(p1[12:], g1[6:]) + u1[:4])
conv_seg_rest = item_main(groups["2b"][0])[6:]
seg(conv_seg_rest, u1[4:12])
run(u1[12:] + p_ops(1, "PC") + x_ops(2))
vm_wait("X1"); stamp("X1 landed")
seg(lat_mfma(1), [])
conv_seg(["2c"], 2, lat_store(1))
vm_wait("G1"); e.wait_lgkm0(); stamp("S2 end"); e.barrier()
g2 = group_ops(2); g3 = group_ops(3)
run(prefetch_ops(groups["3a"][0], 3, 1))
conv_seg(["3a"], 3, mix(pull_ops(2), p_ops(4, "PD") + p_ops(0, "PD") + x_ops(3)[:2]))
conv_seg(["3b"], 3, mix(pull_ops(3), x_ops(3)[2:]))
conv_seg(["3c"], 3, [])
vm_wait("X2"); e.wait_for(pull_last(3)); stamp("S3 end"); e.barrier()
conv_seg(["4a"], 3, lat_reads(2) + lat_unpack(2))
seg(lat_mfma(2), g2[:3])
conv_seg(["4b"], 3, lat_store(2) + g2[3:6])
vm_wait("X3"); e.wait_lgkm0(); stamp("S4 end"); e.barrier()
conv_seg(["5a"], 4, lat_reads(3) + mix(lat_unpack(3), g2[6:]))
seg(lat_mfma(3), g3[:4])
conv_seg(["5b"], 4, lat_store(3) + g3[4:6])
conv_seg(["6a"], 4, g3[6:])
vm_wait("G2"); e.wait_lgkm0(); stamp("S5 end"); e.barrier()
def g4blk(k):
    def f():
        with Region(f"s_cmp_eq_u32 s{sG}, 0"): run(group_ops(4)[3*k:3*k+3])
    return f
conv_seg(["6b"], 5, pull_ops(5) + pull_ops(4))
vm_wait("G3"); e.wait_for(pull_last(4)); stamp("S6 end"); e.barrier()
conv_seg(["6c"], 5, mix(pull_ops(6) + pull_ops(7), [g4blk(0), g4blk(1), g4blk(2), NOP]))
conv_seg(["7a"], 5, [])
e.wait_vm(0); e.wait_for(pull_last(7)); stamp("S7 end"); e.barrier()
conv_seg(["8_2a"], 5, pull_ops(8))
conv_seg(["8_2b", "8_2c"], 5, [])
stamp("row2 done")
for r in range(3, 9):
    o = r - 3
    g = groups[f"8_{r}"]; h = (len(g) + 1)//2
    groups[f"8_{r}x"] = g[:h]; groups[f"8_{r}y"] = g[h:]
    conv_seg([f"8_{r}x"], 5, epilogue_ops(o) + [NOP]*6)
    wait_writes()
    if not args.nobar: e.barrier()
    conv_seg([f"8_{r}y"], 5, store_ops(o))
    if r in (5, 8): stamp(f"row{r} done")
run(epilogue_ops(6))
wait_writes(); e.barrier()
run(store_ops(6))
stamp("end")
if args.stamps:
    e.raw("s_waitcnt vmcnt(0)")
    stamp("stores done"); stamp("end", rt=True)
    e.raw("s_waitcnt lgkmcnt(0)")
    e.salu(f"s_lshl_b32 s{sT0}, s{sWGID}, 2")
    e.salu(f"s_add_u32 s{sT0}, s{sT0}, s{sW}")
    e.salu(f"s_lshl_b32 s{sT0}, s{sT0}, 8")
    e.salu("s_mov_b32 s20, s16"); e.salu("s_mov_b32 s21, s17"); e.salu("s_mov_b32 s22, 0x100000"); e.salu("s_mov_b32 s23, 0x20000")
    e.valu("v_mov_b32 v24, 0", w=V(24))
    e.raw("s_mov_b64 exec, 1")
    for k in range(nstamp[0]):
        e.valu(f"v_mov_b32 v26, s{sSTAMP+2*k}", w=V(26))
        e.valu(f"v_mov_b32 v27, s{sSTAMP+2*k+1}", w=V(27))
        e.vmem(f"buffer_store_dwordx2 v[26:27], v24, s[20:23], s{sT0} offen offset:{8*k}", r=V(24)+V(26, 2))
        e.raw("s_nop 1")
e.label("L_end")
e.raw("s_endpgm")

out.append(e.text())
out.append('.section .rodata,"a"')
out.append(".p2align 6")
out.append(f".amdhsa_kernel {args.name}")
out.append("  .amdhsa_next_free_vgpr 512")
out.append("  .amdhsa_next_free_sgpr 102")
out.append("  .amdhsa_accum_offset 256")
out.append("  .amdhsa_group_segment_fixed_size 0")
out.append("  .amdhsa_kernarg_size 56")
out.append("  .amdhsa_user_sgpr_count 2")
out.append("  .amdhsa_user_sgpr_kernarg_segment_ptr 1")
out.append("  .amdhsa_system_sgpr_workgroup_id_x 1")
out.append(".end_amdhsa_kernel")
print("\n".join(out))
nm = sum(1 for l in e.lines if "v_mfma" in l)
sys.stderr.write(f"nops={e.nops} waits={e.waits} stamps={nstamp[0]} lines={len(e.lines)} mfma={nm} vq={len(vq)} lds={LDS}\n")
```

```python
import sys, argparse
from emit import *

ap = argparse.ArgumentParser()
ap.add_argument("--stamps", action="store_true")
ap.add_argument("--name", default="standalone__detection_seg_fpn_lateral__vision_kernel")
ap.add_argument("--stflag", default="sc1")
ap.add_argument("--inflag", default="")
ap.add_argument("--nostore", action="store_true")
ap.add_argument("--pf", type=int, default=2)
ap.add_argument("--notouch", action="store_true")
ap.add_argument("--nobar", action="store_true")
ap.add_argument("--ctouch", action="store_true")
args = ap.parse_args()

ROWB = 43008; CROWB = 21504
S = 224; MB = 0; MP = 16*S
PB = 16*MP + 512; PP = 2048
WB = PB + 9*PP; WS = 18432
LDS = WB + 4*WS
FINE_B = 9633792; COARSE_B = 2408448; WLAT_B = 18432; WOUT_B = 165888
INV = 0x40000000

SF, SP, SW0, SWO, SO = 20, 24, 28, 32, 36
sW, sX0, sY0, sTY, sG, sH = 40, 41, 42, 43, 45, 46
sT0, sT1, sT2, sT3 = 47, 48, 49, 50
sXO = 51
sM = 52
sWL = 54
sYG = 55
sPO = 56
sOROW = 57
sOSTEP = 58
sPOS = 59
sPL, sPLS = 14, 15
sWG = 18
sTCH = 19
sMG, sSG = 3, 2
sWGID = 101
sSTAMP = 60
vOUT2, vLANE, vM = 0, 1, 2
vROW = 3
vWE, vWO_ = 12, 15
vWL, vPL, vOUT = 18, 19, 20
vDW = 21
vT = 24
vXO, vDP = 30, 31
vFR = 32; NB = 8
vACC = 64
vLA = 148
vLa = 172
vLp = 176
WV = 184
vOR1, vOR2, vOG1, vOG2 = 180, 181, 182, 183
SS = 208; OP = 16*SS; OB = WB
XREG = [144, 216, 228, 240]

e = Emit()
V = lambda n, k=1: R('v', n, k)
nstamp = [0]
def stamp(tag, rt=False):
    if not args.stamps: return
    k = nstamp[0]; nstamp[0] += 1
    assert sSTAMP + 2*k + 1 < 96
    e.raw(f"{'s_memrealtime' if rt else 's_memtime'} s[{sSTAMP+2*k}:{sSTAMP+2*k+1}]")

def wreg(j, dip, t):
    idx = (dip*3 + t)*4
    if j < 7: return ('a', 36*j + idx)
    return ('v', WV + 36*(j-7) + idx)
def wlreg(t, s): return ('v', WV + (t*3 + s)*4)
def acc(o, t): return ('v', vACC + 12*o + 4*t)
def xreg(n, s): return ('a', XREG[n] + 4*s)

lab = [0]
def newlabel(p="L"):
    lab[0] += 1; return f"{p}_{lab[0]}"
class Region:
    def __init__(self, cmp, drain=True): self.cmp = cmp; self.drain = drain
    def __enter__(self):
        self.l = newlabel("Lskip")
        e.salu(self.cmp)
        e.raw(f"s_cbranch_scc0 {self.l}")
        e.region_begin()
    def __exit__(self, *a):
        e.region_end(self.drain)
        e.label(self.l)
def if_else(cmp, fa, fb_):
    le, lj = newlabel("Lelse"), newlabel("Ljoin")
    e.salu(cmp); e.raw(f"s_cbranch_scc0 {le}")
    s0 = e.snapshot()
    fa(); e.raw(f"s_branch {lj}")
    sa = e.snapshot(); e.restore(s0)
    e.label(le); fb_()
    sb = e.snapshot(); e.label(lj); e.merge(sa, sb)
vq = []
def vm_issue(tag): vq.append(tag)
def vm_wait(*tags):
    last = max(i for i, t in enumerate(vq) if t in tags)
    e.wait_vm(len(vq) - 1 - last)
def run(ops):
    for f in ops: f()
content = {}
def setc(regs, tag):
    for r in regs: content[r] = tag
def chk(regs, tag):
    for r in regs: assert content.get(r) == tag, (r, content.get(r), tag)

hdr = open("standalone__detection_seg_fpn_lateral__vision.s.ref").read().split("\n")
out = []
for l in hdr:
    if l.startswith("; @launch"): break
    out.append(l)
out.append(f"; @launch grid=(256,1,1) block=(256,1,1) lds={LDS}")
out.append('.amdgcn_target "amdgcn-amd-amdhsa--gfx950"')
out.append(".text")
out.append(f".globl {args.name}")
out.append(".p2align 8")
out.append(f".type {args.name},@function")
out.append(f"{args.name}:")

stamp("start"); stamp("start", rt=True)
e.salu("s_cmp_ge_u32 s2, 256")
e.raw("s_cbranch_scc1 L_end")
e.raw("s_load_dwordx8 s[4:11], s[0:1], 0")
e.raw("s_load_dwordx2 s[12:13], s[0:1], 32")
if args.stamps:
    e.raw("s_load_dwordx2 s[16:17], s[0:1], 48")
    e.salu(f"s_mov_b32 s{sWGID}, s2")
e.valu("v_lshrrev_b32 v24, 6, v0", w=V(24), r=V(0))
e.valu(f"v_and_b32 v{vLANE}, 63, v0", w=V(vLANE), r=V(0))
e.valu(f"v_readfirstlane_b32 s{sW}, v24", r=V(24), sw=[sW], rfl=True)
e.salu(f"s_and_b32 s{sT0}, s2, 7")
e.salu(f"s_lshr_b32 s{sT1}, s2, 3")
e.salu(f"s_mul_i32 s{sTCH}, s{sT1}, {41*128}")
if args.ctouch:
    e.raw("s_getpc_b64 s[96:97]")
    e.label("L_pc")
    e.salu(f"s_lshl_b32 s98, s{sT1}, 9")
    e.salu("s_min_u32 s98, s98, L_end-L_pc-512")
    e.salu("s_add_u32 s96, s96, s98")
    e.salu("s_addc_u32 s97, s97, 0")
e.salu(f"s_and_b32 s{sT2}, s{sT0}, 1")
e.salu(f"s_lshl_b32 s{sT2}, s{sT2}, 3")
e.salu(f"s_and_b32 s{sT3}, s{sT1}, 7")
e.salu(f"s_add_u32 s{sTY}, s{sT2}, s{sT3}")
e.salu(f"s_lshr_b32 s{sT2}, s{sT0}, 1")
e.salu(f"s_lshl_b32 s{sT2}, s{sT2}, 2")
e.salu(f"s_lshr_b32 s{sT3}, s{sT1}, 3")
e.salu(f"s_add_u32 s{sT2}, s{sT2}, s{sT3}")
e.salu(f"s_mul_i32 s{sX0}, s{sT2}, 14")
e.salu(f"s_mul_i32 s{sY0}, s{sTY}, 14")
e.salu(f"s_lshr_b32 s{sG}, s{sW}, 1", sr=[sW])
e.salu(f"s_and_b32 s{sH}, s{sW}, 1")
e.salu(f"s_mul_i32 s{sSG}, s{sG}, -2")
e.salu(f"s_add_u32 s{sSG}, s{sSG}, 1")
e.salu(f"s_mul_i32 s{sYG}, s{sG}, 15")
e.salu(f"s_add_u32 s{sYG}, s{sYG}, s{sY0}")
e.salu(f"s_sub_u32 s{sYG}, s{sYG}, 1")
e.salu(f"s_lshr_b32 s{sT0}, s{sY0}, 1")
e.salu(f"s_lshl_b32 s{sT1}, s{sG}, 3")
e.salu(f"s_add_u32 s{sT0}, s{sT0}, s{sT1}")
e.salu(f"s_sub_u32 s{sT0}, s{sT0}, 1")
e.salu(f"s_mul_i32 s{sPO}, s{sT0}, {CROWB}")
e.salu(f"s_mul_i32 s{sPOS}, s{sSG}, {CROWB}")
e.salu(f"s_lshl_b32 s{sPLS}, s{sSG}, 11")
e.salu(f"s_lshl_b32 s{sPL}, s{sG}, 14")
e.salu(f"s_lshl_b32 s{sT1}, s{sH}, 10")
e.salu(f"s_add_u32 s{sPL}, s{sPL}, s{sT1}")
e.salu(f"s_add_u32 s{sPL}, s{sPL}, {PB}")
e.valu(f"v_mov_b32 v29, {INV:#x}", w=V(29))
vD0 = vFR
e.valu(f"v_lshlrev_b32 v{vD0}, 4, v{vLANE}", w=V(vD0), r=V(vLANE))
e.valu(f"v_and_b32 v25, 32, v{vLANE}", w=V(25), r=V(vLANE))
e.valu(f"v_xor_b32 v{vD0+1}, v25, v{vD0}", w=V(vD0+1), r=V(25)+V(vD0))
e.valu(f"v_xor_b32 v{vD0+2}, 32, v{vD0}", w=V(vD0+2), r=V(vD0))
e.valu(f"v_lshlrev_b32 v{vD0+4}, 7, v{vLANE}", w=V(vD0+4), r=V(vLANE))
e.salu(f"s_sub_u32 s{sT1}, s{sX0}, 1")
e.valu(f"v_and_b32 v24, 15, v{vLANE}", w=V(24), r=V(vLANE))
e.valu(f"v_lshrrev_b32 v25, 4, v{vLANE}", w=V(25), r=V(vLANE))
e.valu(f"v_add_u32 v27, s{sT1}, v24", w=V(27), r=V(24))
e.valu("v_cmp_gt_u32 vcc, 224, v27", r=V(27), sw=["vcc"])
e.valu("v_mul_u32_u24 v28, 192, v27", w=V(28), r=V(27))
e.valu("v_lshl_add_u32 v28, v25, 4, v28", w=V(28), r=V(25)+V(28))
e.valu(f"v_cndmask_b32 v{vXO}, v29, v28, vcc", w=V(vXO), r=V(29)+V(28), sr=["vcc"])
e.salu(f"s_lshr_b32 s{sT1}, s{sX0}, 1")
e.salu(f"s_sub_u32 s{sT1}, s{sT1}, 1")
e.valu("v_and_b32 v26, 127, v0", w=V(26), r=V(0))
e.valu("v_mul_u32_u24 v27, 5462, v26", w=V(27), r=V(26))
e.valu("v_lshrrev_b32 v27, 16, v27", w=V(27), r=V(27))
e.valu(f"v_cmp_gt_u32 s[{sM}:{sM+1}], 9, v27", r=V(27), sw=[sM])
e.valu("v_mul_u32_u24 v28, 12, v27", w=V(28), r=V(27))
e.valu("v_sub_u32 v26, v26, v28", w=V(26), r=V(26)+V(28))
e.valu(f"v_add_u32 v27, s{sT1}, v27", w=V(27), r=V(27))
e.valu("v_cmp_gt_u32 vcc, 112, v27", r=V(27), sw=["vcc"])
e.valu("v_mul_u32_u24 v28, 192, v27", w=V(28), r=V(27))
e.valu("v_lshl_add_u32 v28, v26, 4, v28", w=V(28), r=V(26)+V(28))
e.valu(f"v_cndmask_b32 v28, v29, v28, vcc", w=V(28), r=V(29)+V(28), sr=["vcc"])
e.valu(f"v_cndmask_b32 v{vDP}, v29, v28, s[{sM}:{sM+1}]", w=V(vDP), r=V(29)+V(28), sr=[sM])
for srd, nb in ((SF, FINE_B), (SP, COARSE_B), (SW0, WLAT_B), (SWO, WOUT_B), (SO, FINE_B)):
    e.salu(f"s_mov_b32 s{srd+2}, {nb}")
    e.salu(f"s_mov_b32 s{srd+3}, 0x20000")
e.salu(f"s_mul_i32 s{sT3}, s{sW}, 6144")
e.raw("s_waitcnt lgkmcnt(0)")
if args.ctouch:
    for k in range(4): e.raw(f"s_load_dword s99, s[96:97], {128*k}")
for srd, p in ((SW0, 8), (SWO, 10), (SF, 4), (SP, 6), (SO, 12)):
    e.salu(f"s_mov_b32 s{srd}, s{p}")
    e.salu(f"s_mov_b32 s{srd+1}, s{p+1}")

GSLOT = {0: 2, 1: 0, 2: 2, 3: 0, 4: 3}
def slot_of(j): return 0 if j < 0 else GSLOT[j // 2] + (j % 2)
def group_ops(G):
    ops = []
    cnt = G < 4
    for blk in range(3):
        def f(blk=blk):
            e.salu(f"s_add_u32 m0, s{sWL}, {GSLOT[G]*WS + blk*6144}", m0=True)
            e.salu(f"s_add_u32 s{sT2}, s{sWG}, {2*G*6144 + blk*55296}")
            e.vmem(f"buffer_load_dwordx4 v{vDW}, s[{SWO}:{SWO+3}], s{sT2} offen lds", r=V(vDW), dma=True)
            if cnt: vm_issue(f"G{G}")
        ops.append(f)
        for p in (1, 2):
            def f(p=p):
                e.vmem(f"buffer_load_dwordx4 v{vDW+p}, s[{SWO}:{SWO+3}], s{sT2} offen offset:{1024*p} lds", r=V(vDW+p), dma=True)
                if cnt: vm_issue(f"G{G}")
            ops.append(f)
    return ops
def p_ops(crp, tag):
    def f():
        if crp == 0:
            e.salu(f"s_mov_b32 m0, s{sPL}", m0=True)
            e.salu(f"s_mul_i32 s{sT1}, s{sG}, 15")
            e.salu(f"s_cmp_eq_u32 s{sTY}, s{sT1}")
            e.salu(f"s_cselect_b32 s{SP+2}, 0, {COARSE_B}")
            e.salu(f"s_cselect_b32 s{sT0}, 0, s{sPO}")
        else:
            e.salu(f"s_mul_i32 s{sT1}, s{sPLS}, {crp}")
            e.salu(f"s_add_u32 m0, s{sPL}, s{sT1}", m0=True)
            e.salu(f"s_mul_i32 s{sT0}, s{sPOS}, {crp}")
            e.salu(f"s_add_u32 s{sT0}, s{sT0}, s{sPO}")
        e.vmem(f"buffer_load_dwordx4 v{vDP}, s[{SP}:{SP+3}], s{sT0} offen {args.inflag} lds", r=V(vDP), dma=True)
        vm_issue(tag)
        if crp == 0: e.salu(f"s_mov_b32 s{SP+2}, {COARSE_B}")
    return [f]
RB = [3, 5, 1, 7]; RH = [1, 1, 1, -7]
def x_ops(n):
    ops = []
    for s in range(3):
        def f(s=s):
            if s == 0:
                e.salu(f"s_mul_i32 s{sXO}, s{sH}, {RH[n]}")
                e.salu(f"s_add_u32 s{sXO}, s{sXO}, {RB[n]}")
                e.salu(f"s_mul_i32 s{sXO}, s{sXO}, s{sSG}")
                e.salu(f"s_add_u32 s{sXO}, s{sXO}, s{sYG}")
                if n == 3:
                    e.salu(f"s_cmp_ge_u32 s{sXO}, 224")
                    e.salu(f"s_cselect_b32 s{SF+2}, 0, {FINE_B}")
                    e.salu(f"s_cselect_b32 s{sXO}, 0, s{sXO}")
                e.salu(f"s_mul_i32 s{sXO}, s{sXO}, {ROWB}")
            k, r0 = xreg(n, s)
            e.vload(f"buffer_load_dwordx4 {rs(k, r0, 4)}, v{vXO}, s[{SF}:{SF+3}], s{sXO} offen offset:{64*s} {args.inflag}", R(k, r0, 4), r=V(vXO))
            vm_issue(f"X{n}"); setc(R(k, r0, 4), ("x", n))
        ops.append(f)
    return ops

pass
def w1_a():
    for half in range(2):
        e.salu(f"s_add_u32 m0, s{sT3}, {WB + half*3072}", m0=True)
        e.salu(f"s_add_u32 s{sT2}, s{sT3}, {half*3072}")
        for p in range(3):
            e.vmem(f"buffer_load_dwordx4 v{vD0+p}, s[{SW0}:{SW0+3}], s{sT2} offen offset:{1024*p} lds", r=V(vD0+p), dma=True)
def w1_b():
    if not args.notouch:
        e.salu("s_mov_b32 exec_hi, 0x1ff")
        e.vload(f"buffer_load_dword v{vD0+5}, v{vD0+4}, s[{SWO}:{SWO+3}], s{sTCH} offen", V(vD0+5), r=V(vD0+4))
        e.salu("s_mov_b32 exec_hi, -1")
if_else(f"s_cmp_lt_u32 s{sW}, 3", w1_a, w1_b)
vm_issue("WL")
run(p_ops(2, "PA") + x_ops(0) + p_ops(3, "PB"))
pass

e.salu(f"s_mul_i32 s{sT3}, s{sH}, 3072")
for p in range(3):
    e.valu(f"v_add_u32 v{vDW+p}, s{sT3}, v{vD0+p}", w=V(vDW+p), r=V(vD0+p))
e.salu(f"s_mul_i32 s{sWG}, s{sG}, 6144")
e.salu(f"s_mul_i32 s{sWL}, s{sG}, {WS}")
e.salu(f"s_add_u32 s{sWL}, s{sWL}, s{sT3}")
e.salu(f"s_add_u32 s{sWL}, s{sWL}, {WB}")
g0 = group_ops(0)
run(g0[:3])
e.valu("v_lshrrev_b32 v26, 2, v24", w=V(26), r=V(24))
e.valu("v_lshl_add_u32 v26, v25, 3, v26", w=V(26), r=V(25)+V(26))
e.valu("v_mul_u32_u24 v26, 192, v26", w=V(26), r=V(26))
e.valu(f"v_and_b32 v27, 3, v{vLANE}", w=V(27), r=V(vLANE))
e.valu("v_and_b32 v28, 1, v25", w=V(28), r=V(25))
e.valu("v_lshlrev_b32 v28, 5, v28", w=V(28), r=V(28))
e.valu(f"v_lshlrev_b32 v{vWL}, 4, v27", w=V(vWL), r=V(27))
e.valu(f"v_xor_b32 v{vWL}, v{vWL}, v28", w=V(vWL), r=V(vWL)+V(28))
e.valu(f"v_add_u32 v{vWL}, v{vWL}, v26", w=V(vWL), r=V(vWL)+V(26))
e.valu(f"v_add_u32 v{vWL}, {WB}, v{vWL}", w=V(vWL), r=V(vWL))
e.valu("v_lshl_add_u32 v26, v27, 3, v26", w=V(26), r=V(27)+V(26))
e.salu(f"s_mul_i32 s{sT0}, s{sH}, 96")
e.salu(f"s_add_u32 s{sT0}, s{sT0}, {WB}")
e.valu(f"v_add_u32 v26, s{sT0}, v26", w=V(26), r=V(26))
e.salu(f"s_mul_i32 s{sT0}, s{sH}, -2")
e.salu(f"s_add_u32 s{sT0}, s{sT0}, 1")
e.valu(f"v_mul_i32_i24 v28, s{sT0}, v28", w=V(28), r=V(28))
e.valu("v_add_u32 v27, v26, v28", w=V(27), r=V(26)+V(28))
e.valu("v_sub_u32 v26, v26, v28", w=V(26), r=V(26)+V(28))
e.salu(f"s_mul_i32 s{sT0}, s{sG}, 12288")
e.salu(f"s_sub_u32 s{sT1}, 12288, s{sT0}")
e.valu(f"v_add_u32 v{vWE}, s{sT0}, v27", w=V(vWE), r=V(27))
e.valu(f"v_add_u32 v{vWE+1}, 6144, v27", w=V(vWE+1), r=V(27))
e.valu(f"v_add_u32 v{vWE+2}, s{sT1}, v27", w=V(vWE+2), r=V(27))
e.valu(f"v_add_u32 v{vWO_}, s{sT0}, v26", w=V(vWO_), r=V(26))
e.valu(f"v_add_u32 v{vWO_+1}, 6144, v26", w=V(vWO_+1), r=V(26))
e.valu(f"v_add_u32 v{vWO_+2}, s{sT1}, v26", w=V(vWO_+2), r=V(26))
e.valu(f"v_mul_u32_u24 v{vM}, {S}, v24", w=V(vM), r=V(24))
e.valu(f"v_lshl_add_u32 v{vM}, v25, 4, v{vM}", w=V(vM), r=V(25)+V(vM))
e.salu(f"s_mul_i32 s{sMG}, s{sG}, {15*MP}")
e.salu(f"s_mul_i32 s{sT1}, s{sSG}, {MP}")
e.valu(f"v_add_u32 v{vROW}, s{sMG}, v{vM}", w=V(vROW), r=V(vM))
for k in range(1, 9):
    e.valu(f"v_add_u32 v{vROW+k}, s{sT1}, v{vROW+k-1}", w=V(vROW+k), r=V(vROW+k-1))
e.salu(f"s_cmp_eq_u32 s{sH}, 1")
e.salu(f"s_cselect_b64 s[{sM}:{sM+1}], -1, 0")
for n in range(4):
    e.valu(f"v_cndmask_b32 v{vLa+n}, v{vROW+RB[n]}, v{vROW+RB[n]+RH[n]}, s[{sM}:{sM+1}]", w=V(vLa+n), r=V(vROW+RB[n])+V(vROW+RB[n]+RH[n]))
e.valu("v_add_u32 v26, 1, v24", w=V(26), r=V(24))
e.valu("v_lshrrev_b32 v26, 1, v26", w=V(26), r=V(26))
e.valu("v_mul_u32_u24 v26, 192, v26", w=V(26), r=V(26))
e.valu(f"v_lshl_add_u32 v26, v25, 4, v26", w=V(26), r=V(25)+V(26))
e.salu(f"s_lshl_b32 s{sT0}, s{sG}, 14")
e.salu(f"s_add_u32 s{sT0}, s{sT0}, {PB}")
e.valu(f"v_add_u32 v{vPL}, s{sT0}, v26", w=V(vPL), r=V(26))
for n, crp in enumerate((2, 3, 1)):
    e.salu(f"s_mul_i32 s{sT0}, s{sPLS}, {crp}")
    e.valu(f"v_add_u32 v{vLp+n}, s{sT0}, v{vPL}", w=V(vLp+n), r=V(vPL))
e.salu(f"s_mul_i32 s{sT0}, s{sPLS}, 4")
e.salu(f"s_cmp_eq_u32 s{sH}, 1")
e.salu(f"s_cselect_b32 s{sT0}, 0, s{sT0}")
e.valu(f"v_add_u32 v{vLp+3}, s{sT0}, v{vPL}", w=V(vLp+3), r=V(vPL))
e.valu(f"v_mul_u32_u24 v26, {SS}, v24", w=V(26), r=V(24))
e.salu(f"s_mul_i32 s{sT0}, s{sH}, 96")
e.salu(f"s_mul_i32 s{sT1}, s{sG}, {7*OP}")
e.salu(f"s_add_u32 s{sT1}, s{sT1}, {OB}")
e.salu(f"s_add_u32 s{sT0}, s{sT0}, s{sT1}")
e.valu(f"v_add_u32 v26, s{sT0}, v26", w=V(26), r=V(26))
e.valu("v_and_b32 v27, 1, v25", w=V(27), r=V(25))
e.valu("v_lshrrev_b32 v28, 1, v25", w=V(28), r=V(25))
e.valu(f"v_lshl_add_u32 v{vOUT}, v25, 3, v26", w=V(vOUT), r=V(25)+V(26))
e.valu("v_lshl_add_u32 v26, v27, 5, v26", w=V(26), r=V(27)+V(26))
e.valu(f"v_lshl_add_u32 v{vOUT2}, v28, 4, v26", w=V(vOUT2), r=V(28)+V(26))
e.salu(f"s_lshl_b32 s{sT0}, s{sH}, 6")
e.salu(f"s_mul_i32 s{sT2}, s{sH}, 24")
e.salu(f"s_add_u32 s{sT2}, s{sT2}, 128")
e.salu(f"s_mul_i32 s{sT3}, s{sX0}, 192")
for (sn, vr, vg) in ((sT0, vOR1, vOG1), (sT2, vOR2, vOG2)):
    e.valu(f"v_add_u32 v26, s{sn}, v{vLANE}", w=V(26), r=V(vLANE))
    e.valu("v_mul_u32_u24 v27, 5462, v26", w=V(27), r=V(26))
    e.valu("v_lshrrev_b32 v27, 16, v27", w=V(27), r=V(27))
    e.valu("v_lshlrev_b32 v26, 4, v26", w=V(26), r=V(26))
    e.valu(f"v_lshl_add_u32 v27, v27, 4, v26", w=V(27), r=V(27)+V(26))
    e.valu(f"v_add_u32 v{vr}, s{sT1}, v27", w=V(vr), r=V(27))
    e.valu(f"v_add_u32 v{vg}, s{sT3}, v26", w=V(vg), r=V(26))
e.salu(f"s_lshl_b32 s{sT0}, s{sH}, 3")
e.salu(f"s_sub_u32 s{sT0}, 24, s{sT0}")
e.valu(f"v_cmp_gt_u32 vcc, s{sT0}, v{vLANE}", r=V(vLANE), sw=["vcc"])
e.valu(f"v_cndmask_b32 v{vOG2}, v29, v{vOG2}, vcc", w=V(vOG2), r=V(29)+V(vOG2), sr=["vcc"])
e.valu(f"v_cndmask_b32 v{vOR2}, v{vOR1}, v{vOR2}, vcc", w=V(vOR2), r=V(vOR1)+V(vOR2), sr=["vcc"])
e.salu(f"s_mul_i32 s{sT0}, s{sG}, 13")
e.salu(f"s_add_u32 s{sT0}, s{sT0}, s{sY0}")
e.salu(f"s_mul_i32 s{sOROW}, s{sT0}, {ROWB}")
e.salu(f"s_mul_i32 s{sOSTEP}, s{sSG}, {ROWB}")

def pull_ops(j, order=(2, 1, 0)):
    slot = slot_of(j)
    ops = []
    if j < 0:
        for s in range(3):
            for t in range(6):
                for hh in range(2):
                    k, b = wlreg(t, s)
                    off = slot*WS + s*6144 + hh*768 + 64*(t >> 1) + 8*(t & 1)
                    def f(k=k, b=b, off=off, hh=hh):
                        e.ds_read(f"ds_read_b64_tr_b16 {rs(k, b+2*hh, 2)}, v{vWL} offset:{off}", R(k, b+2*hh, 2), V(vWL))
                        setc(R(k, b+2*hh, 2), "wl")
                    ops.append(f)
    else:
        for dip in order:
            for t in range(3):
                for hh in range(2):
                    k, b = wreg(j, dip, t)
                    va = (vWE if t % 2 == 0 else vWO_) + dip
                    off = slot*WS + hh*768 + 32*t
                    def f(k=k, b=b, off=off, hh=hh, va=va):
                        e.ds_read(f"ds_read_b64_tr_b16 {rs(k, b+2*hh, 2)}, v{va} offset:{off}", R(k, b+2*hh, 2), V(va))
                        setc(R(k, b+2*hh, 2), ("w", j))
                    ops.append(f)
    return ops
def pull_last(j): return R(*wreg(j, 0, 2), 4)

def mix(a, b):
    if not a: return list(b)
    if not b: return list(a)
    res = []; bi = 0
    for n, x in enumerate(a):
        res.append(x)
        tgt = ((n + 1) * len(b)) // len(a)
        while bi < tgt: res.append(b[bi]); bi += 1
    return res + list(b[bi:])
NOP = lambda: None
def pad(ops, n): return list(ops) + [NOP] * max(0, n - len(ops))
def seg(main, fill):
    nm, nf = len(main), len(fill)
    fi = 0
    for n, m in enumerate(main):
        m()
        tgt = -(-(n + 1) * nf // nm) if nm else nf
        while fi < min(tgt, nf): fill[fi](); fi += 1
    while fi < nf: fill[fi](); fi += 1

vLB = 124
LSET = [vLA, vLA, vLA, vLA]
def lat_reads(n):
    A = LSET[n]
    ops = []
    for u in range(3):
        def f(u=u):
            e.ds_read(f"ds_read_b128 v[{A+8*u+4}:{A+8*u+7}], v{vLp+n} offset:{64*u}", V(A+8*u+4, 4), V(vLp+n))
            setc(V(A+8*u+4, 4), ("p", n))
        ops.append(f)
    return ops
def lat_unpack(n):
    A = LSET[n]
    ops = []
    for u in range(3):
        a = A + 8*u
        sq = [(a+0, a+4, 0), (a+1, a+4, 1), (a+2, a+5, 0), (a+3, a+5, 1),
              (a+4, a+6, 0), (a+5, a+6, 1), (a+6, a+7, 0), (a+7, a+7, 1)]
        for (d, s_, hi) in sq:
            def f(d=d, s_=s_, hi=hi):
                assert content[('v', s_)][0] == "p"
                tg = ("pu", content[('v', s_)][1])
                content[('v', d)] = tg
                if hi: e.valu(f"v_and_b32 v{d}, 0xffff0000, v{s_}", w=V(d), r=V(s_))
                else:  e.valu(f"v_lshlrev_b32 v{d}, 16, v{s_}", w=V(d), r=V(s_))
            ops.append(f)
    return ops
def lat_mfma(n, umajor=False):
    A = LSET[n]
    ops = []
    order = [(s, t) for u in range(3) for s in range(3) for t in (2*u, 2*u+1)] if umajor else [(s, t) for s in range(3) for t in range(6)]
    for (s, t) in order:
        def f(s=s, t=t):
            chk(R(*wlreg(t, s), 4), "wl"); chk(R(*xreg(n, s), 4), ("x", n)); chk(V(A+4*t, 4), ("pu", n))
            e.mfma(('v', A+4*t), wlreg(t, s), xreg(n, s), ('v', A+4*t))
        ops.append(f)
    return ops
def lat_store(n):
    A = LSET[n]
    ops = []
    for u in range(3):
        for d in range(4):
            def f(u=u, d=d):
                e.valu(f"v_cvt_pk_bf16_f32 v{A+8*u+d}, v{A+8*u+2*d}, v{A+8*u+2*d+1}", w=V(A+8*u+d), r=V(A+8*u+2*d, 2))
            ops.append(f)
        def f(u=u): e.ds_write(f"ds_write_b128 v{vLa+n}, v[{A+8*u}:{A+8*u+3}] offset:{64*u}", V(vLa+n) + V(A+8*u, 4))
        ops.append(f)
    return ops

inited = set(); done = set()
def conv_mfma(j, rp, dip, t, fr):
    o = rp - dip
    def f():
        first = (o, t) not in inited
        inited.add((o, t))
        chk(R(*wreg(j, dip, t), 4), ("w", j)); chk(V(fr, 4), ("f", rp, j))
        done.add((rp, j, dip, t))
        e.mfma(acc(o, t), wreg(j, dip, t), ('v', fr), None if first else acc(o, t))
    return f
def frag_read(j, rp, fr):
    dj, s = divmod(j, 3)
    def f():
        e.ds_read(f"ds_read_b128 v[{fr}:{fr+3}], v{vROW+rp} offset:{dj*S + 64*s}", V(fr, 4), V(vROW+rp))
        setc(V(fr, 4), ("f", rp, j))
    return f
def epilogue_ops(o):
    ops = []
    a = vACC + 12*o
    cv = [(a+0, a+0), (a+1, a+2), (a+2, a+4), (a+3, a+6), (a+8, a+8), (a+9, a+10)]
    for (d, s_) in cv:
        def f(d=d, s_=s_):
            assert all((o+dp, j, dp, t) in done for dp in range(3) for j in range(9) for t in range(3)), o
            e.valu(f"v_cvt_pk_bf16_f32 v{d}, v{s_}, v{s_+1}", w=V(d), r=V(s_, 2))
        ops.append(f)
    for d in range(2):
        def f(d=d):
            e.valu(f"v_permlane16_swap_b32 v{a+d}, v{a+2+d}", w=V(a+d)+V(a+2+d), r=V(a+d)+V(a+2+d), perm=True)
        ops.append(f)
    ops.append(lambda: e.ds_write(f"ds_write_b64 v{vOUT}, v[{a+8}:{a+9}] offset:{o*OP + 64}", V(a+8, 2) + V(vOUT)))
    ops.append(lambda: e.ds_write(f"ds_write_b128 v{vOUT2}, v[{a}:{a+3}] offset:{o*OP}", V(a, 4) + V(vOUT2)))
    return ops
def store_ops(o):
    a = vACC + 12*o
    ops = []
    ops.append(lambda: e.ds_read(f"ds_read_b128 v[{a}:{a+3}], v{vOR1} offset:{o*OP}", V(a, 4), V(vOR1)))
    ops.append(lambda: e.ds_read(f"ds_read_b128 v[{a+4}:{a+7}], v{vOR2} offset:{o*OP}", V(a+4, 4), V(vOR2)))
    def so():
        e.salu(f"s_mul_i32 s{sT3}, s{sOSTEP}, {o}")
        e.salu(f"s_add_u32 s{sT3}, s{sT3}, s{sOROW}")
    ops += [so, NOP, NOP, NOP, NOP]
    if not args.nostore:
        ops.append(lambda: e.vmem(f"buffer_store_dwordx4 v[{a}:{a+3}], v{vOG1}, s[{SO}:{SO+3}], s{sT3} offen {args.stflag}",
                                  r=V(a, 4) + V(vOG1), wide_data=V(a, 4)))
        ops.append(NOP)
        ops.append(lambda: e.vmem(f"buffer_store_dwordx4 v[{a+4}:{a+7}], v{vOG2}, s[{SO}:{SO+3}], s{sT3} offen {args.stflag}",
                                  r=V(a+4, 4) + V(vOG2), wide_data=V(a+4, 4)))
    return ops
wq = []
def wait_writes():
    last = -1
    for i, d in enumerate(e.lgkm):
        if not d: last = i
    if last >= 0:
        n = len(e.lgkm) - 1 - last
        e.raw(f"s_waitcnt lgkmcnt({n})"); e.lgkm = e.lgkm[last+1:]

def dips_of(rp): return [d for d in (2, 1, 0) if 0 <= rp - d <= 6]
vis_row = {3: 2, 4: 2, 5: 3, 6: 3, 1: 4, 2: 4, 0: 5, 7: 5, 8: 5}
items = []
groups = {}
def add(name, rps, js, rowmajor=False):
    g = groups.setdefault(name, [])
    lst = [(rp, j) for rp in rps for j in js] if rowmajor else [(rp, j) for j in js for rp in rps]
    for rp, j in lst:
        g.append(len(items)); items.append((rp, j))
RA_, RB_, RC_, RD_ = (3, 4), (5, 6), (2, 1), (7, 8, 0)
add("2a", RA_, (0,)); add("2b", (3,), (1,)); add("2c", (4,), (1,))
add("3a", RB_, (0,)); add("3b", RB_, (1,)); add("3c", RA_, (2,))
add("4a", RB_, (2,)); add("4b", RA_, (3,))
add("5a", RB_, (3,)); add("5b", RC_, (0,))
add("6a", RC_, (1,)); add("6b", RC_, (2, 3)); add("6b", RD_, (0,)); add("6c", RD_, (1, 2, 3))
add("7a", (0, 1), (4, 5, 6, 7), rowmajor=True)
add("8_2a", (2,), (4, 5)); add("8_2b", (2,), (6, 7)); add("8_2c", (0, 1, 2), (8,))
for r in range(3, 9): add(f"8_{r}", (r,), (4, 5, 6, 7, 8))
assert sorted(items) == sorted((r, j) for r in range(9) for j in range(9))
fr_done = set()
PF = args.pf
def fb(n): return vFR + 4*(n % NB)
def item_main(n):
    rp, j = items[n]
    return [conv_mfma(j, rp, dip, t, fb(n)) for dip in dips_of(rp) for t in range(3)]
def prefetch_ops(n, step, depth=None):
    ops = []
    ahead = 0
    lim = 9*(PF if depth is None else depth)
    for m in range(n, min(n + NB - 1, len(items))):
        rp, j = items[m]
        if m > n and ahead >= lim + 1: break
        if m not in fr_done:
            if vis_row[rp] > step: break
            fr_done.add(m); ops.append(frag_read(j, rp, fb(m)))
        ahead += 3*len(dips_of(rp))
    return ops
def conv_seg(names, step, fill, depth=None):
    idx = [n for nm_ in names for n in groups[nm_]]
    main = []; mk = {}
    for n in idx:
        assert vis_row[items[n][0]] <= step
        mk[len(main)] = n; main += item_main(n)
    nm, nf = len(main), len(fill)
    fi = 0
    for p, m in enumerate(main):
        if p in mk:
            n = mk[p]
            if n not in fr_done: run(prefetch_ops(n, step, 0)[:1])
            m(); run(prefetch_ops(n, step, depth))
        else: m()
        tgt = -(-(p + 1) * nf // nm)
        while fi < min(tgt, nf): fill[fi](); fi += 1
    while fi < nf: fill[fi](); fi += 1

vm_wait("WL"); stamp("B0 wait done"); e.barrier()
run(mix(pull_ops(-1), g0[3:]))
pass
vm_wait("PA"); e.wait_lgkm0(); pass; e.barrier()
run(lat_reads(0))
run(x_ops(1))
run(lat_unpack(0))
vm_wait("X0"); stamp("X0 landed")
lm = lat_mfma(0, umajor=True); ls = lat_store(0); g1 = group_ops(1)
seg(lm[:9], g1[:3])
seg(lm[9:15], ls[:5])
seg(lm[15:], ls[5:10])
run(ls[10:])
vm_wait("G0"); e.wait_lgkm0(); stamp("S1 end"); e.barrier()
p0 = pull_ops(0); p1 = pull_ops(1); u1 = lat_unpack(1)
run(prefetch_ops(groups["2a"][0], 2, 1)); run(p0[:6])
m2 = [conv_mfma(0, items[n][0], d, t, fb(n)) for d in (2, 1, 0) for n in groups["2a"] for t in range(3)]
seg(m2[:6], p0[6:])
seg(m2[6:], mix(lat_reads(1) + prefetch_ops(groups["2b"][0], 2, 1) + p1[:12], g1[3:6]))
seg(item_main(groups["2b"][0])[:6], mix(p1[12:], g1[6:]) + u1[:4])
conv_seg_rest = item_main(groups["2b"][0])[6:]
seg(conv_seg_rest, u1[4:12])
run(u1[12:] + p_ops(1, "PC") + x_ops(2))
vm_wait("X1"); stamp("X1 landed")
seg(lat_mfma(1), [])
conv_seg(["2c"], 2, lat_store(1))
vm_wait("G1"); e.wait_lgkm0(); stamp("S2 end"); e.barrier()
g2 = group_ops(2); g3 = group_ops(3)
run(prefetch_ops(groups["3a"][0], 3, 1))
conv_seg(["3a"], 3, mix(pull_ops(2), p_ops(4, "PD") + p_ops(0, "PD") + x_ops(3)[:2]))
conv_seg(["3b"], 3, mix(pull_ops(3), x_ops(3)[2:]))
conv_seg(["3c"], 3, [])
vm_wait("X2"); e.wait_for(pull_last(3)); stamp("S3 end"); e.barrier()
conv_seg(["4a"], 3, lat_reads(2) + lat_unpack(2))
seg(lat_mfma(2), g2[:3])
conv_seg(["4b"], 3, lat_store(2) + g2[3:6])
vm_wait("X3"); e.wait_lgkm0(); stamp("S4 end"); e.barrier()
conv_seg(["5a"], 4, lat_reads(3) + mix(lat_unpack(3), g2[6:]))
seg(lat_mfma(3), g3[:4])
conv_seg(["5b"], 4, lat_store(3) + g3[4:6])
conv_seg(["6a"], 4, g3[6:])
vm_wait("G2"); e.wait_lgkm0(); stamp("S5 end"); e.barrier()
def g4blk(k):
    def f():
        with Region(f"s_cmp_eq_u32 s{sG}, 0"): run(group_ops(4)[3*k:3*k+3])
    return f
conv_seg(["6b"], 5, pull_ops(5) + pull_ops(4))
vm_wait("G3"); e.wait_for(pull_last(4)); stamp("S6 end"); e.barrier()
conv_seg(["6c"], 5, mix(pull_ops(6) + pull_ops(7), [g4blk(0), g4blk(1), g4blk(2), NOP]))
conv_seg(["7a"], 5, [])
e.wait_vm(0); e.wait_for(pull_last(7)); stamp("S7 end"); e.barrier()
conv_seg(["8_2a"], 5, pull_ops(8))
conv_seg(["8_2b", "8_2c"], 5, [])
stamp("row2 done")
for r in range(3, 9):
    o = r - 3
    g = groups[f"8_{r}"]; h = (len(g) + 1)//2
    groups[f"8_{r}x"] = g[:h]; groups[f"8_{r}y"] = g[h:]
    conv_seg([f"8_{r}x"], 5, epilogue_ops(o) + [NOP]*6)
    wait_writes()
    if not args.nobar: e.barrier()
    conv_seg([f"8_{r}y"], 5, store_ops(o))
    if r in (5, 8): stamp(f"row{r} done")
run(epilogue_ops(6))
wait_writes(); e.barrier()
run(store_ops(6))
stamp("end")
if args.stamps:
    e.raw("s_waitcnt vmcnt(0)")
    stamp("stores done"); stamp("end", rt=True)
    e.raw("s_waitcnt lgkmcnt(0)")
    e.salu(f"s_lshl_b32 s{sT0}, s{sWGID}, 2")
    e.salu(f"s_add_u32 s{sT0}, s{sT0}, s{sW}")
    e.salu(f"s_lshl_b32 s{sT0}, s{sT0}, 8")
    e.salu("s_mov_b32 s20, s16"); e.salu("s_mov_b32 s21, s17"); e.salu("s_mov_b32 s22, 0x100000"); e.salu("s_mov_b32 s23, 0x20000")
    e.valu("v_mov_b32 v24, 0", w=V(24))
    e.raw("s_mov_b64 exec, 1")
    for k in range(nstamp[0]):
        e.valu(f"v_mov_b32 v26, s{sSTAMP+2*k}", w=V(26))
        e.valu(f"v_mov_b32 v27, s{sSTAMP+2*k+1}", w=V(27))
        e.vmem(f"buffer_store_dwordx2 v[26:27], v24, s[20:23], s{sT0} offen offset:{8*k}", r=V(24)+V(26, 2))
        e.raw("s_nop 1")
e.label("L_end")
e.raw("s_endpgm")

out.append(e.text())
out.append('.section .rodata,"a"')
out.append(".p2align 6")
out.append(f".amdhsa_kernel {args.name}")
out.append("  .amdhsa_next_free_vgpr 512")
out.append("  .amdhsa_next_free_sgpr 102")
out.append("  .amdhsa_accum_offset 256")
out.append("  .amdhsa_group_segment_fixed_size 0")
out.append("  .amdhsa_kernarg_size 56")
out.append("  .amdhsa_user_sgpr_count 2")
out.append("  .amdhsa_user_sgpr_kernarg_segment_ptr 1")
out.append("  .amdhsa_system_sgpr_workgroup_id_x 1")
out.append(".end_amdhsa_kernel")
print("\n".join(out))
nm = sum(1 for l in e.lines if "v_mfma" in l)
sys.stderr.write(f"nops={e.nops} waits={e.waits} stamps={nstamp[0]} lines={len(e.lines)} mfma={nm} vq={len(vq)} lds={LDS}\n")
```

```python
import sys, argparse
from emit import *

ap = argparse.ArgumentParser()
ap.add_argument("--stamps", action="store_true")
ap.add_argument("--name", default="standalone__detection_seg_fpn_lateral__vision_kernel")
ap.add_argument("--stflag", default="sc1")
ap.add_argument("--inflag", default="")
ap.add_argument("--nostore", action="store_true")
ap.add_argument("--pf", type=int, default=2)
ap.add_argument("--notouch", action="store_true")
ap.add_argument("--nobar", action="store_true")
ap.add_argument("--ctouch", action="store_true")
ap.add_argument("--top", type=int, default=0)
ap.add_argument("--zero", action="store_true")
ap.add_argument("--fin", type=int, default=1)
ap.add_argument("--lastplain", type=int, default=0)
ap.add_argument("--early", action="store_true")
args = ap.parse_args()

ROWB = 43008; CROWB = 21504
S = 224; MB = 0; MP = 16*S
PB = 17*MP + 512; PP = 2048
WB = PB + 9*PP; WS = 18432
LDS = WB + 4*WS
FINE_B = 9633792; COARSE_B = 2408448; WLAT_B = 18432; WOUT_B = 165888
INV = 0x40000000

SF, SP, SW0, SWO, SO = 20, 24, 28, 32, 36
sW, sX0, sY0, sTY, sG, sH = 40, 41, 42, 43, 45, 46
sT0, sT1, sT2, sT3 = 47, 48, 49, 50
sXO = 51
sM = 52
sWL = 54
sYG = 55
sPO = 56
sOROW = 57
sOSTEP = 58
sPOS = 59
sPL, sPLS = 14, 15
sWG = 18
sTCH = 19
sMG, sSG = 3, 2
sWGID = 101
sSTAMP = 60
vOUT2, vLANE, vM = 0, 1, 2
vROW = 3
vWE, vWO_ = 12, 15
vWL, vPL, vOUT = 18, 19, 20
vDW = 21
vT = 24
vXO, vDP = 30, 31
vFR = 32; NB = 8
vACC = 64
vLA = 148
vLa = 172
vLp = 176
WV = 184
vOR1, vOR2, vOG1, vOG2 = 180, 181, 182, 183
SS = 208; OP = 16*SS; OB = WB
XREG = [144, 216, 228, 240]

e = Emit()
V = lambda n, k=1: R('v', n, k)
nstamp = [0]
def stamp(tag, rt=False):
    if not args.stamps: return
    if args.early and tag in ("S3 end","S4 end","S5 end","S6 end","row2 done","row5 done","row8 done","end") and not rt: return
    if not args.early and tag.startswith("E:"): return
    SKIPST = ("row5 done", "row8 done", "S6 end")
    if tag in SKIPST: return
    k = nstamp[0]; nstamp[0] += 1
    assert sSTAMP + 2*k + 1 < 93
    e.raw(f"{'s_memrealtime' if rt else 's_memtime'} s[{sSTAMP+2*k}:{sSTAMP+2*k+1}]")

def wreg(j, dip, t):
    idx = (dip*3 + t)*4
    if j < 7: return ('a', 36*j + idx)
    return ('v', WV + 36*(j-7) + idx)
def wlreg(t, s): return ('v', WV + (t*3 + s)*4)
def acc(o, t): return ('v', vACC + 12*o + 4*t)
def xreg(n, s): return ('a', XREG[n] + 4*s)

lab = [0]
def newlabel(p="L"):
    lab[0] += 1; return f"{p}_{lab[0]}"
class Region:
    def __init__(self, cmp, drain=True): self.cmp = cmp; self.drain = drain
    def __enter__(self):
        self.l = newlabel("Lskip")
        e.salu(self.cmp)
        e.raw(f"s_cbranch_scc0 {self.l}")
        e.region_begin()
    def __exit__(self, *a):
        e.region_end(self.drain)
        e.label(self.l)
def if_else(cmp, fa, fb_):
    le, lj = newlabel("Lelse"), newlabel("Ljoin")
    e.salu(cmp); e.raw(f"s_cbranch_scc0 {le}")
    s0 = e.snapshot()
    fa(); e.raw(f"s_branch {lj}")
    sa = e.snapshot(); e.restore(s0)
    e.label(le); fb_()
    sb = e.snapshot(); e.label(lj); e.merge(sa, sb)
vq = []
def vm_issue(tag): vq.append(tag)
def vm_wait(*tags):
    last = max(i for i, t in enumerate(vq) if t in tags)
    e.wait_vm(len(vq) - 1 - last)
def run(ops):
    for f in ops: f()
content = {}
def setc(regs, tag):
    for r in regs: content[r] = tag
def chk(regs, tag):
    for r in regs: assert content.get(r) == tag, (r, content.get(r), tag)

hdr = open("standalone__detection_seg_fpn_lateral__vision.s.ref").read().split("\n")
out = []
for l in hdr:
    if l.startswith("; @launch"): break
    out.append(l)
out.append(f"; @launch grid=(256,1,1) block=(256,1,1) lds={LDS}")
out.append('.amdgcn_target "amdgcn-amd-amdhsa--gfx950"')
out.append(".text")
out.append(f".globl {args.name}")
out.append(".p2align 8")
out.append(f".type {args.name},@function")
out.append(f"{args.name}:")

stamp("start"); stamp("start", rt=True)
e.salu("s_cmp_ge_u32 s2, 256")
e.raw("s_cbranch_scc1 L_end")
if args.top:
    e.raw("s_getpc_b64 s[94:95]")
e.raw("s_load_dwordx8 s[4:11], s[0:1], 0")
e.raw("s_load_dwordx2 s[12:13], s[0:1], 32")
for k in range(args.top): e.raw(f"s_load_dword s93, s[94:95], {128*(k+1)}")
if args.stamps:
    e.raw("s_load_dwordx2 s[16:17], s[0:1], 48")
    e.salu(f"s_mov_b32 s{sWGID}, s2")
e.valu("v_lshrrev_b32 v24, 6, v0", w=V(24), r=V(0))
e.valu(f"v_and_b32 v{vLANE}, 63, v0", w=V(vLANE), r=V(0))
e.valu(f"v_readfirstlane_b32 s{sW}, v24", r=V(24), sw=[sW], rfl=True)
e.salu(f"s_and_b32 s{sT0}, s2, 7")
e.salu(f"s_lshr_b32 s{sT1}, s2, 3")
e.salu(f"s_mul_i32 s{sTCH}, s{sT1}, {41*128}")
if args.ctouch:
    e.raw("s_getpc_b64 s[96:97]")
    e.label("L_pc")
    e.salu(f"s_lshl_b32 s98, s{sT1}, 9")
    e.salu("s_min_u32 s98, s98, L_end-L_pc-512")
    e.salu("s_add_u32 s96, s96, s98")
    e.salu("s_addc_u32 s97, s97, 0")
e.salu(f"s_and_b32 s{sT2}, s{sT0}, 1")
e.salu(f"s_lshl_b32 s{sT2}, s{sT2}, 3")
e.salu(f"s_and_b32 s{sT3}, s{sT1}, 7")
e.salu(f"s_add_u32 s{sTY}, s{sT2}, s{sT3}")
e.salu(f"s_lshr_b32 s{sT2}, s{sT0}, 1")
e.salu(f"s_lshl_b32 s{sT2}, s{sT2}, 2")
e.salu(f"s_lshr_b32 s{sT3}, s{sT1}, 3")
e.salu(f"s_add_u32 s{sT2}, s{sT2}, s{sT3}")
e.salu(f"s_mul_i32 s{sX0}, s{sT2}, 14")
e.salu(f"s_mul_i32 s{sY0}, s{sTY}, 14")
e.salu(f"s_lshr_b32 s{sG}, s{sW}, 1", sr=[sW])
e.salu(f"s_and_b32 s{sH}, s{sW}, 1")
e.salu(f"s_mul_i32 s{sSG}, s{sG}, -2")
e.salu(f"s_add_u32 s{sSG}, s{sSG}, 1")
e.salu(f"s_mul_i32 s{sYG}, s{sG}, 15")
e.salu(f"s_add_u32 s{sYG}, s{sYG}, s{sY0}")
e.salu(f"s_sub_u32 s{sYG}, s{sYG}, 1")
e.salu(f"s_lshr_b32 s{sT0}, s{sY0}, 1")
e.salu(f"s_lshl_b32 s{sT1}, s{sG}, 3")
e.salu(f"s_add_u32 s{sT0}, s{sT0}, s{sT1}")
e.salu(f"s_sub_u32 s{sT0}, s{sT0}, 1")
e.salu(f"s_mul_i32 s{sPO}, s{sT0}, {CROWB}")
e.salu(f"s_mul_i32 s{sPOS}, s{sSG}, {CROWB}")
e.salu(f"s_lshl_b32 s{sPLS}, s{sSG}, 11")
e.salu(f"s_lshl_b32 s{sPL}, s{sG}, 14")
e.salu(f"s_lshl_b32 s{sT1}, s{sH}, 10")
e.salu(f"s_add_u32 s{sPL}, s{sPL}, s{sT1}")
e.salu(f"s_add_u32 s{sPL}, s{sPL}, {PB}")
e.valu(f"v_mov_b32 v29, {INV:#x}", w=V(29))
vD0 = vFR
e.valu(f"v_lshlrev_b32 v{vD0}, 4, v{vLANE}", w=V(vD0), r=V(vLANE))
e.valu(f"v_and_b32 v25, 32, v{vLANE}", w=V(25), r=V(vLANE))
e.valu(f"v_xor_b32 v{vD0+1}, v25, v{vD0}", w=V(vD0+1), r=V(25)+V(vD0))
e.valu(f"v_xor_b32 v{vD0+2}, 32, v{vD0}", w=V(vD0+2), r=V(vD0))
e.valu(f"v_lshlrev_b32 v{vD0+4}, 7, v{vLANE}", w=V(vD0+4), r=V(vLANE))
e.salu(f"s_sub_u32 s{sT1}, s{sX0}, 1")
e.valu(f"v_and_b32 v24, 15, v{vLANE}", w=V(24), r=V(vLANE))
e.valu(f"v_lshrrev_b32 v25, 4, v{vLANE}", w=V(25), r=V(vLANE))
e.valu(f"v_add_u32 v27, s{sT1}, v24", w=V(27), r=V(24))
e.valu("v_cmp_gt_u32 vcc, 224, v27", r=V(27), sw=["vcc"])
e.valu("v_mul_u32_u24 v28, 192, v27", w=V(28), r=V(27))
e.valu("v_lshl_add_u32 v28, v25, 4, v28", w=V(28), r=V(25)+V(28))
e.valu(f"v_cndmask_b32 v{vXO}, v29, v28, vcc", w=V(vXO), r=V(29)+V(28), sr=["vcc"])
e.salu(f"s_lshr_b32 s{sT1}, s{sX0}, 1")
e.salu(f"s_sub_u32 s{sT1}, s{sT1}, 1")
e.valu("v_and_b32 v26, 127, v0", w=V(26), r=V(0))
e.valu("v_mul_u32_u24 v27, 5462, v26", w=V(27), r=V(26))
e.valu("v_lshrrev_b32 v27, 16, v27", w=V(27), r=V(27))
e.valu(f"v_cmp_gt_u32 s[{sM}:{sM+1}], 9, v27", r=V(27), sw=[sM])
e.valu("v_mul_u32_u24 v28, 12, v27", w=V(28), r=V(27))
e.valu("v_sub_u32 v26, v26, v28", w=V(26), r=V(26)+V(28))
e.valu(f"v_add_u32 v27, s{sT1}, v27", w=V(27), r=V(27))
e.valu("v_cmp_gt_u32 vcc, 112, v27", r=V(27), sw=["vcc"])
e.valu("v_mul_u32_u24 v28, 192, v27", w=V(28), r=V(27))
e.valu("v_lshl_add_u32 v28, v26, 4, v28", w=V(28), r=V(26)+V(28))
e.valu(f"v_cndmask_b32 v28, v29, v28, vcc", w=V(28), r=V(29)+V(28), sr=["vcc"])
e.valu(f"v_cndmask_b32 v{vDP}, v29, v28, s[{sM}:{sM+1}]", w=V(vDP), r=V(29)+V(28), sr=[sM])
for srd, nb in ((SF, FINE_B), (SP, COARSE_B), (SW0, WLAT_B), (SWO, WOUT_B), (SO, FINE_B)):
    e.salu(f"s_mov_b32 s{srd+2}, {nb}")
    e.salu(f"s_mov_b32 s{srd+3}, 0x20000")
e.salu(f"s_mul_i32 s{sT3}, s{sW}, 6144")
stamp("E:pre-kernarg-wait")
e.raw("s_waitcnt lgkmcnt(0)")
stamp("E:kernarg")
if args.ctouch:
    for k in range(4): e.raw(f"s_load_dword s99, s[96:97], {128*k}")
for srd, p in ((SW0, 8), (SWO, 10), (SF, 4), (SP, 6), (SO, 12)):
    e.salu(f"s_mov_b32 s{srd}, s{p}")
    e.salu(f"s_mov_b32 s{srd+1}, s{p+1}")

GSLOT = {0: 2, 1: 0, 2: 2, 3: 0, 4: 3}
def slot_of(j): return 0 if j < 0 else GSLOT[j // 2] + (j % 2)
def group_ops(G):
    ops = []
    cnt = G < 4
    for blk in range(3):
        def f(blk=blk):
            e.salu(f"s_add_u32 m0, s{sWL}, {GSLOT[G]*WS + blk*6144}", m0=True)
            e.salu(f"s_add_u32 s{sT2}, s{sWG}, {2*G*6144 + blk*55296}")
            e.vmem(f"buffer_load_dwordx4 v{vDW}, s[{SWO}:{SWO+3}], s{sT2} offen lds", r=V(vDW), dma=True)
            if cnt: vm_issue(f"G{G}")
        ops.append(f)
        for p in (1, 2):
            def f(p=p):
                e.vmem(f"buffer_load_dwordx4 v{vDW+p}, s[{SWO}:{SWO+3}], s{sT2} offen offset:{1024*p} lds", r=V(vDW+p), dma=True)
                if cnt: vm_issue(f"G{G}")
            ops.append(f)
    return ops
def p_ops(crp, tag):
    def f():
        if crp == 0:
            e.salu(f"s_mov_b32 m0, s{sPL}", m0=True)
            e.salu(f"s_mul_i32 s{sT1}, s{sG}, 15")
            e.salu(f"s_cmp_eq_u32 s{sTY}, s{sT1}")
            e.salu(f"s_cselect_b32 s{SP+2}, 0, {COARSE_B}")
            e.salu(f"s_cselect_b32 s{sT0}, 0, s{sPO}")
        else:
            e.salu(f"s_mul_i32 s{sT1}, s{sPLS}, {crp}")
            e.salu(f"s_add_u32 m0, s{sPL}, s{sT1}", m0=True)
            e.salu(f"s_mul_i32 s{sT0}, s{sPOS}, {crp}")
            e.salu(f"s_add_u32 s{sT0}, s{sT0}, s{sPO}")
        e.vmem(f"buffer_load_dwordx4 v{vDP}, s[{SP}:{SP+3}], s{sT0} offen {args.inflag} lds", r=V(vDP), dma=True)
        vm_issue(tag)
        if crp == 0: e.salu(f"s_mov_b32 s{SP+2}, {COARSE_B}")
    return [f]
RB = [3, 5, 1, 7]; RH = [1, 1, 1, -7]
def x_ops(n):
    ops = []
    for s in range(3):
        def f(s=s):
            if s == 0:
                e.salu(f"s_mul_i32 s{sXO}, s{sH}, {RH[n]}")
                e.salu(f"s_add_u32 s{sXO}, s{sXO}, {RB[n]}")
                e.salu(f"s_mul_i32 s{sXO}, s{sXO}, s{sSG}")
                e.salu(f"s_add_u32 s{sXO}, s{sXO}, s{sYG}")
                if n == 3:
                    e.salu(f"s_cmp_ge_u32 s{sXO}, 224")
                    e.salu(f"s_cselect_b32 s{SF+2}, 0, {FINE_B}")
                    e.salu(f"s_cselect_b32 s{sXO}, 0, s{sXO}")
                e.salu(f"s_mul_i32 s{sXO}, s{sXO}, {ROWB}")
            k, r0 = xreg(n, s)
            e.vload(f"buffer_load_dwordx4 {rs(k, r0, 4)}, v{vXO}, s[{SF}:{SF+3}], s{sXO} offen offset:{64*s} {args.inflag}", R(k, r0, 4), r=V(vXO))
            vm_issue(f"X{n}"); setc(R(k, r0, 4), ("x", n))
        ops.append(f)
    return ops

pass
def w1_a():
    for half in range(2):
        e.salu(f"s_add_u32 m0, s{sT3}, {WB + half*3072}", m0=True)
        e.salu(f"s_add_u32 s{sT2}, s{sT3}, {half*3072}")
        for p in range(3):
            e.vmem(f"buffer_load_dwordx4 v{vD0+p}, s[{SW0}:{SW0+3}], s{sT2} offen offset:{1024*p} lds", r=V(vD0+p), dma=True)
def w1_b():
    if not args.notouch:
        e.salu("s_mov_b32 exec_hi, 0x1ff")
        e.vload(f"buffer_load_dword v{vD0+5}, v{vD0+4}, s[{SWO}:{SWO+3}], s{sTCH} offen", V(vD0+5), r=V(vD0+4))
        e.salu("s_mov_b32 exec_hi, -1")
if_else(f"s_cmp_lt_u32 s{sW}, 3", w1_a, w1_b)
vm_issue("WL")
run(p_ops(2, "PA") + x_ops(0) + p_ops(3, "PB"))
stamp("E:W1 issued")

e.salu(f"s_mul_i32 s{sT3}, s{sH}, 3072")
for p in range(3):
    e.valu(f"v_add_u32 v{vDW+p}, s{sT3}, v{vD0+p}", w=V(vDW+p), r=V(vD0+p))
e.salu(f"s_mul_i32 s{sWG}, s{sG}, 6144")
e.salu(f"s_mul_i32 s{sWL}, s{sG}, {WS}")
e.salu(f"s_add_u32 s{sWL}, s{sWL}, s{sT3}")
e.salu(f"s_add_u32 s{sWL}, s{sWL}, {WB}")
g0 = group_ops(0)
run(g0[:3])
e.valu("v_lshrrev_b32 v26, 2, v24", w=V(26), r=V(24))
e.valu("v_lshl_add_u32 v26, v25, 3, v26", w=V(26), r=V(25)+V(26))
e.valu("v_mul_u32_u24 v26, 192, v26", w=V(26), r=V(26))
e.valu(f"v_and_b32 v27, 3, v{vLANE}", w=V(27), r=V(vLANE))
e.valu("v_and_b32 v28, 1, v25", w=V(28), r=V(25))
e.valu("v_lshlrev_b32 v28, 5, v28", w=V(28), r=V(28))
e.valu(f"v_lshlrev_b32 v{vWL}, 4, v27", w=V(vWL), r=V(27))
e.valu(f"v_xor_b32 v{vWL}, v{vWL}, v28", w=V(vWL), r=V(vWL)+V(28))
e.valu(f"v_add_u32 v{vWL}, v{vWL}, v26", w=V(vWL), r=V(vWL)+V(26))
e.valu(f"v_add_u32 v{vWL}, {WB}, v{vWL}", w=V(vWL), r=V(vWL))
e.valu("v_lshl_add_u32 v26, v27, 3, v26", w=V(26), r=V(27)+V(26))
e.salu(f"s_mul_i32 s{sT0}, s{sH}, 96")
e.salu(f"s_add_u32 s{sT0}, s{sT0}, {WB}")
e.valu(f"v_add_u32 v26, s{sT0}, v26", w=V(26), r=V(26))
e.salu(f"s_mul_i32 s{sT0}, s{sH}, -2")
e.salu(f"s_add_u32 s{sT0}, s{sT0}, 1")
e.valu(f"v_mul_i32_i24 v28, s{sT0}, v28", w=V(28), r=V(28))
e.valu("v_add_u32 v27, v26, v28", w=V(27), r=V(26)+V(28))
e.valu("v_sub_u32 v26, v26, v28", w=V(26), r=V(26)+V(28))
e.salu(f"s_mul_i32 s{sT0}, s{sG}, 12288")
e.salu(f"s_sub_u32 s{sT1}, 12288, s{sT0}")
e.valu(f"v_add_u32 v{vWE}, s{sT0}, v27", w=V(vWE), r=V(27))
e.valu(f"v_add_u32 v{vWE+1}, 6144, v27", w=V(vWE+1), r=V(27))
e.valu(f"v_add_u32 v{vWE+2}, s{sT1}, v27", w=V(vWE+2), r=V(27))
e.valu(f"v_add_u32 v{vWO_}, s{sT0}, v26", w=V(vWO_), r=V(26))
e.valu(f"v_add_u32 v{vWO_+1}, 6144, v26", w=V(vWO_+1), r=V(26))
e.valu(f"v_add_u32 v{vWO_+2}, s{sT1}, v26", w=V(vWO_+2), r=V(26))
e.valu(f"v_mul_u32_u24 v{vM}, {S}, v24", w=V(vM), r=V(24))
e.valu(f"v_lshl_add_u32 v{vM}, v25, 4, v{vM}", w=V(vM), r=V(25)+V(vM))
e.salu(f"s_mul_i32 s{sMG}, s{sG}, {15*MP}")
e.salu(f"s_mul_i32 s{sT1}, s{sSG}, {MP}")
e.valu(f"v_add_u32 v{vROW}, s{sMG}, v{vM}", w=V(vROW), r=V(vM))
for k in range(1, 9):
    e.valu(f"v_add_u32 v{vROW+k}, s{sT1}, v{vROW+k-1}", w=V(vROW+k), r=V(vROW+k-1))
e.salu(f"s_cmp_eq_u32 s{sH}, 1")
e.salu(f"s_cselect_b64 s[{sM}:{sM+1}], -1, 0")
for n in range(4):
    e.valu(f"v_cndmask_b32 v{vLa+n}, v{vROW+RB[n]}, v{vROW+RB[n]+RH[n]}, s[{sM}:{sM+1}]", w=V(vLa+n), r=V(vROW+RB[n])+V(vROW+RB[n]+RH[n]))
if args.zero:
    e.valu("v_cmp_lt_u32 vcc, 13, v24", r=V(24), sw=["vcc"])
    e.valu(f"v_add_u32 v26, {16*MP}, v{vM}", w=V(26), r=V(vM))
    for k in range(4): e.valu(f"v_mov_b32 v{vFR+8+k}, 0", w=V(vFR+8+k))
    for k in range(9):
        e.valu(f"v_cndmask_b32 v{vROW+k}, v{vROW+k}, v26, vcc", w=V(vROW+k), r=V(vROW+k)+V(26), sr=["vcc"])
    e.ds_write(f"ds_write_b128 v{vD0}, v[{vFR+8}:{vFR+11}] offset:{16*MP + 14*S}", V(vD0) + V(vFR+8, 4))
e.valu("v_add_u32 v26, 1, v24", w=V(26), r=V(24))
e.valu("v_lshrrev_b32 v26, 1, v26", w=V(26), r=V(26))
e.valu("v_mul_u32_u24 v26, 192, v26", w=V(26), r=V(26))
e.valu(f"v_lshl_add_u32 v26, v25, 4, v26", w=V(26), r=V(25)+V(26))
e.salu(f"s_lshl_b32 s{sT0}, s{sG}, 14")
e.salu(f"s_add_u32 s{sT0}, s{sT0}, {PB}")
e.valu(f"v_add_u32 v{vPL}, s{sT0}, v26", w=V(vPL), r=V(26))
for n, crp in enumerate((2, 3, 1)):
    e.salu(f"s_mul_i32 s{sT0}, s{sPLS}, {crp}")
    e.valu(f"v_add_u32 v{vLp+n}, s{sT0}, v{vPL}", w=V(vLp+n), r=V(vPL))
e.salu(f"s_mul_i32 s{sT0}, s{sPLS}, 4")
e.salu(f"s_cmp_eq_u32 s{sH}, 1")
e.salu(f"s_cselect_b32 s{sT0}, 0, s{sT0}")
e.valu(f"v_add_u32 v{vLp+3}, s{sT0}, v{vPL}", w=V(vLp+3), r=V(vPL))
e.valu(f"v_mul_u32_u24 v26, {SS}, v24", w=V(26), r=V(24))
e.salu(f"s_mul_i32 s{sT0}, s{sH}, 96")
e.salu(f"s_mul_i32 s{sT1}, s{sG}, {7*OP}")
e.salu(f"s_add_u32 s{sT1}, s{sT1}, {OB}")
e.salu(f"s_add_u32 s{sT0}, s{sT0}, s{sT1}")
e.valu(f"v_add_u32 v26, s{sT0}, v26", w=V(26), r=V(26))
e.valu("v_and_b32 v27, 1, v25", w=V(27), r=V(25))
e.valu("v_lshrrev_b32 v28, 1, v25", w=V(28), r=V(25))
e.valu(f"v_lshl_add_u32 v{vOUT}, v25, 3, v26", w=V(vOUT), r=V(25)+V(26))
e.valu("v_lshl_add_u32 v26, v27, 5, v26", w=V(26), r=V(27)+V(26))
e.valu(f"v_lshl_add_u32 v{vOUT2}, v28, 4, v26", w=V(vOUT2), r=V(28)+V(26))
e.salu(f"s_lshl_b32 s{sT0}, s{sH}, 6")
e.salu(f"s_mul_i32 s{sT2}, s{sH}, 24")
e.salu(f"s_add_u32 s{sT2}, s{sT2}, 128")
e.salu(f"s_mul_i32 s{sT3}, s{sX0}, 192")
for (sn, vr, vg) in ((sT0, vOR1, vOG1), (sT2, vOR2, vOG2)):
    e.valu(f"v_add_u32 v26, s{sn}, v{vLANE}", w=V(26), r=V(vLANE))
    e.valu("v_mul_u32_u24 v27, 5462, v26", w=V(27), r=V(26))
    e.valu("v_lshrrev_b32 v27, 16, v27", w=V(27), r=V(27))
    e.valu("v_lshlrev_b32 v26, 4, v26", w=V(26), r=V(26))
    e.valu(f"v_lshl_add_u32 v27, v27, 4, v26", w=V(27), r=V(27)+V(26))
    e.valu(f"v_add_u32 v{vr}, s{sT1}, v27", w=V(vr), r=V(27))
    e.valu(f"v_add_u32 v{vg}, s{sT3}, v26", w=V(vg), r=V(26))
e.salu(f"s_lshl_b32 s{sT0}, s{sH}, 3")
e.salu(f"s_sub_u32 s{sT0}, 24, s{sT0}")
e.valu(f"v_cmp_gt_u32 vcc, s{sT0}, v{vLANE}", r=V(vLANE), sw=["vcc"])
e.valu(f"v_cndmask_b32 v{vOG2}, v29, v{vOG2}, vcc", w=V(vOG2), r=V(29)+V(vOG2), sr=["vcc"])
e.valu(f"v_cndmask_b32 v{vOR2}, v{vOR1}, v{vOR2}, vcc", w=V(vOR2), r=V(vOR1)+V(vOR2), sr=["vcc"])
e.salu(f"s_mul_i32 s{sT0}, s{sG}, 13")
e.salu(f"s_add_u32 s{sT0}, s{sT0}, s{sY0}")
e.salu(f"s_mul_i32 s{sOROW}, s{sT0}, {ROWB}")
e.salu(f"s_mul_i32 s{sOSTEP}, s{sSG}, {ROWB}")

def pull_ops(j, order=(2, 1, 0)):
    slot = slot_of(j)
    ops = []
    if j < 0:
        for s in range(3):
            for t in range(6):
                for hh in range(2):
                    k, b = wlreg(t, s)
                    off = slot*WS + s*6144 + hh*768 + 64*(t >> 1) + 8*(t & 1)
                    def f(k=k, b=b, off=off, hh=hh):
                        e.ds_read(f"ds_read_b64_tr_b16 {rs(k, b+2*hh, 2)}, v{vWL} offset:{off}", R(k, b+2*hh, 2), V(vWL))
                        setc(R(k, b+2*hh, 2), "wl")
                    ops.append(f)
    else:
        for dip in order:
            for t in range(3):
                for hh in range(2):
                    k, b = wreg(j, dip, t)
                    va = (vWE if t % 2 == 0 else vWO_) + dip
                    off = slot*WS + hh*768 + 32*t
                    def f(k=k, b=b, off=off, hh=hh, va=va):
                        e.ds_read(f"ds_read_b64_tr_b16 {rs(k, b+2*hh, 2)}, v{va} offset:{off}", R(k, b+2*hh, 2), V(va))
                        setc(R(k, b+2*hh, 2), ("w", j))
                    ops.append(f)
    return ops
def pull_last(j): return R(*wreg(j, 0, 2), 4)

def mix(a, b):
    if not a: return list(b)
    if not b: return list(a)
    res = []; bi = 0
    for n, x in enumerate(a):
        res.append(x)
        tgt = ((n + 1) * len(b)) // len(a)
        while bi < tgt: res.append(b[bi]); bi += 1
    return res + list(b[bi:])
NOP = lambda: None
def pad(ops, n): return list(ops) + [NOP] * max(0, n - len(ops))
def seg(main, fill):
    nm, nf = len(main), len(fill)
    fi = 0
    for n, m in enumerate(main):
        m()
        tgt = -(-(n + 1) * nf // nm) if nm else nf
        while fi < min(tgt, nf): fill[fi](); fi += 1
    while fi < nf: fill[fi](); fi += 1

vLB = 124
LSET = [vLA, vLA, vLA, vLA]
def lat_reads(n):
    A = LSET[n]
    ops = []
    for u in range(3):
        def f(u=u):
            e.ds_read(f"ds_read_b128 v[{A+8*u+4}:{A+8*u+7}], v{vLp+n} offset:{64*u}", V(A+8*u+4, 4), V(vLp+n))
            setc(V(A+8*u+4, 4), ("p", n))
        ops.append(f)
    return ops
def lat_unpack(n):
    A = LSET[n]
    ops = []
    for u in range(3):
        a = A + 8*u
        sq = [(a+0, a+4, 0), (a+1, a+4, 1), (a+2, a+5, 0), (a+3, a+5, 1),
              (a+4, a+6, 0), (a+5, a+6, 1), (a+6, a+7, 0), (a+7, a+7, 1)]
        for (d, s_, hi) in sq:
            def f(d=d, s_=s_, hi=hi):
                assert content[('v', s_)][0] == "p"
                tg = ("pu", content[('v', s_)][1])
                content[('v', d)] = tg
                if hi: e.valu(f"v_and_b32 v{d}, 0xffff0000, v{s_}", w=V(d), r=V(s_))
                else:  e.valu(f"v_lshlrev_b32 v{d}, 16, v{s_}", w=V(d), r=V(s_))
            ops.append(f)
    return ops
def lat_mfma(n, umajor=False):
    A = LSET[n]
    ops = []
    order = [(s, t) for u in range(3) for s in range(3) for t in (2*u, 2*u+1)] if umajor else [(s, t) for s in range(3) for t in range(6)]
    for (s, t) in order:
        def f(s=s, t=t):
            chk(R(*wlreg(t, s), 4), "wl"); chk(R(*xreg(n, s), 4), ("x", n)); chk(V(A+4*t, 4), ("pu", n))
            e.mfma(('v', A+4*t), wlreg(t, s), xreg(n, s), ('v', A+4*t))
        ops.append(f)
    return ops
def lat_store(n):
    A = LSET[n]
    ops = []
    for u in range(3):
        for d in range(4):
            def f(u=u, d=d):
                e.valu(f"v_cvt_pk_bf16_f32 v{A+8*u+d}, v{A+8*u+2*d}, v{A+8*u+2*d+1}", w=V(A+8*u+d), r=V(A+8*u+2*d, 2))
            ops.append(f)
        def f(u=u): e.ds_write(f"ds_write_b128 v{vLa+n}, v[{A+8*u}:{A+8*u+3}] offset:{64*u}", V(vLa+n) + V(A+8*u, 4))
        ops.append(f)
    return ops

inited = set(); done = set()
def conv_mfma(j, rp, dip, t, fr):
    o = rp - dip
    def f():
        first = (o, t) not in inited
        inited.add((o, t))
        chk(R(*wreg(j, dip, t), 4), ("w", j)); chk(V(fr, 4), ("f", rp, j))
        done.add((rp, j, dip, t))
        e.mfma(acc(o, t), wreg(j, dip, t), ('v', fr), None if first else acc(o, t))
    return f
def frag_read(j, rp, fr):
    dj, s = divmod(j, 3)
    def f():
        e.ds_read(f"ds_read_b128 v[{fr}:{fr+3}], v{vROW+rp} offset:{dj*S + 64*s}", V(fr, 4), V(vROW+rp))
        setc(V(fr, 4), ("f", rp, j))
    return f
def epilogue_ops(o):
    ops = []
    a = vACC + 12*o
    cv = [(a+0, a+0), (a+1, a+2), (a+2, a+4), (a+3, a+6), (a+8, a+8), (a+9, a+10)]
    for (d, s_) in cv:
        def f(d=d, s_=s_):
            assert all((o+dp, j, dp, t) in done for dp in range(3) for j in range(9) for t in range(3)), o
            e.valu(f"v_cvt_pk_bf16_f32 v{d}, v{s_}, v{s_+1}", w=V(d), r=V(s_, 2))
        ops.append(f)
    for d in range(2):
        def f(d=d):
            e.valu(f"v_permlane16_swap_b32 v{a+d}, v{a+2+d}", w=V(a+d)+V(a+2+d), r=V(a+d)+V(a+2+d), perm=True)
        ops.append(f)
    ops.append(lambda: e.ds_write(f"ds_write_b64 v{vOUT}, v[{a+8}:{a+9}] offset:{o*OP + 64}", V(a+8, 2) + V(vOUT)))
    ops.append(lambda: e.ds_write(f"ds_write_b128 v{vOUT2}, v[{a}:{a+3}] offset:{o*OP}", V(a, 4) + V(vOUT2)))
    return ops
def stf(o): return "" if o >= 7-args.lastplain else args.stflag
def store_ops(o):
    a = vACC + 12*o
    ops = []
    ops.append(lambda: e.ds_read(f"ds_read_b128 v[{a}:{a+3}], v{vOR1} offset:{o*OP}", V(a, 4), V(vOR1)))
    ops.append(lambda: e.ds_read(f"ds_read_b128 v[{a+4}:{a+7}], v{vOR2} offset:{o*OP}", V(a+4, 4), V(vOR2)))
    def so():
        e.salu(f"s_mul_i32 s{sT3}, s{sOSTEP}, {o}")
        e.salu(f"s_add_u32 s{sT3}, s{sT3}, s{sOROW}")
    ops += [so, NOP, NOP, NOP, NOP]
    if not args.nostore:
        ops.append(lambda: e.vmem(f"buffer_store_dwordx4 v[{a}:{a+3}], v{vOG1}, s[{SO}:{SO+3}], s{sT3} offen {stf(o)}",
                                  r=V(a, 4) + V(vOG1), wide_data=V(a, 4)))
        ops.append(NOP)
        ops.append(lambda: e.vmem(f"buffer_store_dwordx4 v[{a+4}:{a+7}], v{vOG2}, s[{SO}:{SO+3}], s{sT3} offen {stf(o)}",
                                  r=V(a+4, 4) + V(vOG2), wide_data=V(a+4, 4)))
    return ops
wq = []
def wait_writes():
    last = -1
    for i, d in enumerate(e.lgkm):
        if not d: last = i
    if last >= 0:
        n = len(e.lgkm) - 1 - last
        e.raw(f"s_waitcnt lgkmcnt({n})"); e.lgkm = e.lgkm[last+1:]

def dips_of(rp): return [d for d in (2, 1, 0) if 0 <= rp - d <= 6]
vis_row = {3: 2, 4: 2, 5: 3, 6: 3, 1: 4, 2: 4, 0: 5, 7: 5, 8: 5}
items = []
groups = {}
def add(name, rps, js, rowmajor=False):
    g = groups.setdefault(name, [])
    lst = [(rp, j) for rp in rps for j in js] if rowmajor else [(rp, j) for j in js for rp in rps]
    for rp, j in lst:
        g.append(len(items)); items.append((rp, j))
RA_, RB_, RC_, RD_ = (3, 4), (5, 6), (2, 1), (7, 8, 0)
add("2a", RA_, (0,)); add("2b", (3,), (1,)); add("2c", (4,), (1,))
add("3a", RB_, (0,)); add("3b", RB_, (1,)); add("3c", RA_, (2,))
add("4a", RB_, (2,)); add("4b", RA_, (3,))
add("5a", RB_, (3,)); add("5b", RC_, (0,))
add("6a", RC_, (1,)); add("6b", RC_, (2, 3)); add("6b", RD_, (0,)); add("6c", RD_, (1, 2, 3))
add("7a", (0, 1), (4, 5, 6, 7), rowmajor=True)
add("8_2a", (2,), (4, 5)); add("8_2b", (2,), (6, 7)); add("8_2c", (0, 1, 2), (8,))
for r in range(3, 9): add(f"8_{r}", (r,), (4, 5, 6, 7, 8))
assert sorted(items) == sorted((r, j) for r in range(9) for j in range(9))
fr_done = set()
PF = args.pf
def fb(n): return vFR + 4*(n % NB)
def item_main(n):
    rp, j = items[n]
    return [conv_mfma(j, rp, dip, t, fb(n)) for dip in dips_of(rp) for t in range(3)]
def prefetch_ops(n, step, depth=None):
    ops = []
    ahead = 0
    lim = 9*(PF if depth is None else depth)
    for m in range(n, min(n + NB - 1, len(items))):
        rp, j = items[m]
        if m > n and ahead >= lim + 1: break
        if m not in fr_done:
            if vis_row[rp] > step: break
            fr_done.add(m); ops.append(frag_read(j, rp, fb(m)))
        ahead += 3*len(dips_of(rp))
    return ops
def conv_seg(names, step, fill, depth=None):
    idx = [n for nm_ in names for n in groups[nm_]]
    main = []; mk = {}
    for n in idx:
        assert vis_row[items[n][0]] <= step
        mk[len(main)] = n; main += item_main(n)
    nm, nf = len(main), len(fill)
    fi = 0
    for p, m in enumerate(main):
        if p in mk:
            n = mk[p]
            if n not in fr_done: run(prefetch_ops(n, step, 0)[:1])
            m(); run(prefetch_ops(n, step, depth))
        else: m()
        tgt = -(-(p + 1) * nf // nm)
        while fi < min(tgt, nf): fill[fi](); fi += 1
    while fi < nf: fill[fi](); fi += 1

stamp("E:setup done"); vm_wait("WL"); stamp("B0 wait done"); e.barrier()
run(mix(pull_ops(-1), g0[3:]))
pass
vm_wait("PA"); e.wait_lgkm0(); pass; e.barrier()
run(lat_reads(0))
run(x_ops(1))
run(lat_unpack(0))
g1 = group_ops(1)
def lateral_first(n, fill_a, fill_b, stores=True):
    lm = lat_mfma(n); ls = lat_store(n)
    idx = [i for i, t in enumerate(vq) if t == f"X{n}"]
    for s_ in range(3):
        e.wait_vm(len(vq) - 1 - idx[s_])
        if s_ == 0: stamp(f"X{n} landed")
        if s_ < 2: seg(lm[6*s_:6*s_+6], (fill_a, fill_b)[s_])
    run(lm[12:])
    if stores: run(ls)
lateral_first(0, [], [], stores=False)
run(g1[:3])
run(lat_store(0))
vm_wait("G0"); e.wait_lgkm0(); stamp("S1 end"); e.barrier()
p0 = pull_ops(0); p1 = pull_ops(1); u1 = lat_unpack(1)
run(prefetch_ops(groups["2a"][0], 2, 1)); run(p0[:6])
m2 = [conv_mfma(0, items[n][0], d, t, fb(n)) for d in (2, 1, 0) for n in groups["2a"] for t in range(3)]
seg(m2[:6], p0[6:])
seg(m2[6:], mix(lat_reads(1) + prefetch_ops(groups["2b"][0], 2, 1) + p1[:12], g1[3:6]))
seg(item_main(groups["2b"][0])[:6], mix(p1[12:], g1[6:]) + u1[:4])
conv_seg_rest = item_main(groups["2b"][0])[6:]
seg(conv_seg_rest, u1[4:12])
run(u1[12:] + p_ops(1, "PC") + x_ops(2))
lateral_first(1, [], [], stores=False)
conv_seg(["2c"], 2, lat_store(1))
vm_wait("G1"); e.wait_lgkm0(); stamp("S2 end"); e.barrier()
g2 = group_ops(2); g3 = group_ops(3)
run(prefetch_ops(groups["3a"][0], 3, 1))
conv_seg(["3a"], 3, mix(pull_ops(2), p_ops(4, "PD") + p_ops(0, "PD") + x_ops(3)[:2]))
conv_seg(["3b"], 3, mix(pull_ops(3), x_ops(3)[2:]))
conv_seg(["3c"], 3, [])
vm_wait("X2"); e.wait_for(pull_last(3)); stamp("S3 end"); e.barrier()
conv_seg(["4a"], 3, lat_reads(2) + lat_unpack(2))
seg(lat_mfma(2), g2[:3])
conv_seg(["4b"], 3, lat_store(2) + g2[3:6])
vm_wait("X3"); e.wait_lgkm0(); stamp("S4 end"); e.barrier()
conv_seg(["5a"], 4, lat_reads(3) + mix(lat_unpack(3), g2[6:]))
seg(lat_mfma(3), g3[:4])
conv_seg(["5b"], 4, lat_store(3) + g3[4:6])
conv_seg(["6a"], 4, g3[6:])
vm_wait("G2"); e.wait_lgkm0(); stamp("S5 end"); e.barrier()
def g4blk(k):
    def f():
        with Region(f"s_cmp_eq_u32 s{sG}, 0"): run(group_ops(4)[3*k:3*k+3])
    return f
conv_seg(["6b"], 5, pull_ops(5) + pull_ops(4))
vm_wait("G3"); e.wait_for(pull_last(4)); stamp("S6 end"); e.barrier()
conv_seg(["6c"], 5, mix(pull_ops(6) + pull_ops(7), [g4blk(0), g4blk(1), g4blk(2), NOP]))
conv_seg(["7a"], 5, [])
e.wait_vm(0); e.wait_for(pull_last(7)); stamp("S7 end"); e.barrier()
conv_seg(["8_2a"], 5, pull_ops(8))
conv_seg(["8_2b", "8_2c"], 5, [])
stamp("row2 done")
def halves(r):
    g = groups[f"8_{r}"]; h = (len(g) + 1)//2
    groups[f"8_{r}x"] = g[:h]; groups[f"8_{r}y"] = g[h:]
for r in range(3, 9): halves(r)
if args.fin == 0:
    for r in range(3, 9):
        o = r - 3
        conv_seg([f"8_{r}x"], 5, epilogue_ops(o) + [NOP]*6)
        wait_writes(); e.barrier()
        conv_seg([f"8_{r}y"], 5, store_ops(o))
    run(epilogue_ops(6))
else:
    conv_seg(["8_3"], 5, epilogue_ops(0))
    conv_seg(["8_4x"], 5, epilogue_ops(1) + [NOP]*6)
    wait_writes(); e.barrier()
    conv_seg(["8_4y"], 5, store_ops(0))
    conv_seg(["8_5x"], 5, store_ops(1))
    conv_seg(["8_5y"], 5, epilogue_ops(2))
    conv_seg(["8_6x"], 5, epilogue_ops(3) + [NOP]*6)
    wait_writes(); e.barrier()
    conv_seg(["8_6y"], 5, store_ops(2))
    conv_seg(["8_7x"], 5, epilogue_ops(4) + store_ops(3))
    conv_seg(["8_7y"], 5, [])
    g8 = groups["8_8"]
    run(prefetch_ops(g8[0], 5, 9))
    m8 = [conv_mfma(items[n][1], 8, 2, t, fb(n)) for t in range(3) for n in g8]
    ep5 = epilogue_ops(5)
    seg(m8[:8], ep5)
    wait_writes(); e.barrier()
    s4 = [f for f in store_ops(4) if f is not NOP]; s5 = [f for f in store_ops(5) if f is not NOP]
    seg(m8[8:], s4[:2] + s5[:2] + s4[2:])
    EP6_PARTIAL = True
    run(epilogue_ops(6))
    run(s5[2:])
wait_writes(); e.barrier()
run([f for f in store_ops(6) if f is not NOP])
stamp("end")
if args.stamps:
    e.raw("s_waitcnt vmcnt(0)")
    stamp("stores done"); stamp("end", rt=True)
    e.raw("s_waitcnt lgkmcnt(0)")
    e.salu(f"s_lshl_b32 s{sT0}, s{sWGID}, 2")
    e.salu(f"s_add_u32 s{sT0}, s{sT0}, s{sW}")
    e.salu(f"s_lshl_b32 s{sT0}, s{sT0}, 8")
    e.salu("s_mov_b32 s20, s16"); e.salu("s_mov_b32 s21, s17"); e.salu("s_mov_b32 s22, 0x100000"); e.salu("s_mov_b32 s23, 0x20000")
    e.valu("v_mov_b32 v24, 0", w=V(24))
    e.raw("s_mov_b64 exec, 1")
    for k in range(nstamp[0]):
        e.valu(f"v_mov_b32 v26, s{sSTAMP+2*k}", w=V(26))
        e.valu(f"v_mov_b32 v27, s{sSTAMP+2*k+1}", w=V(27))
        e.vmem(f"buffer_store_dwordx2 v[26:27], v24, s[20:23], s{sT0} offen offset:{8*k}", r=V(24)+V(26, 2))
        e.raw("s_nop 1")
e.label("L_end")
e.raw("s_endpgm")

out.append(e.text())
out.append('.section .rodata,"a"')
out.append(".p2align 6")
out.append(f".amdhsa_kernel {args.name}")
out.append("  .amdhsa_next_free_vgpr 512")
out.append("  .amdhsa_next_free_sgpr 102")
out.append("  .amdhsa_accum_offset 256")
out.append("  .amdhsa_group_segment_fixed_size 0")
out.append("  .amdhsa_kernarg_size 56")
out.append("  .amdhsa_user_sgpr_count 2")
out.append("  .amdhsa_user_sgpr_kernarg_segment_ptr 1")
out.append("  .amdhsa_system_sgpr_workgroup_id_x 1")
out.append(".end_amdhsa_kernel")
print("\n".join(out))
nm = sum(1 for l in e.lines if "v_mfma" in l)
sys.stderr.write(f"nops={e.nops} waits={e.waits} stamps={nstamp[0]} lines={len(e.lines)} mfma={nm} vq={len(vq)} lds={LDS}\n")
```

```python
import sys, argparse
from emit import *

ap = argparse.ArgumentParser()
ap.add_argument("--stamps", action="store_true")
ap.add_argument("--name", default="standalone__detection_seg_fpn_lateral__vision_kernel")
ap.add_argument("--stflag", default="sc1")
ap.add_argument("--inflag", default="")
ap.add_argument("--nostore", action="store_true")
ap.add_argument("--pf", type=int, default=2)
ap.add_argument("--notouch", action="store_true")
ap.add_argument("--nobar", action="store_true")
ap.add_argument("--ctouch", action="store_true")
ap.add_argument("--top", type=int, default=0)
ap.add_argument("--zero", action="store_true")
ap.add_argument("--fin", type=int, default=0)
ap.add_argument("--t2", type=int, default=0)
ap.add_argument("--c64", action="store_true")
ap.add_argument("--lastplain", type=int, default=0)
ap.add_argument("--early", action="store_true")
args = ap.parse_args()

ROWB = 43008; CROWB = 21504
S = 224; MB = 0; MP = 16*S
PB = 17*MP + 512; PP = 2048
WB = PB + 9*PP; WS = 18432
LDS = WB + 4*WS
FINE_B = 9633792; COARSE_B = 2408448; WLAT_B = 18432; WOUT_B = 165888
INV = 0x40000000

SF, SP, SW0, SWO, SO = 20, 24, 28, 32, 36
sW, sX0, sY0, sTY, sG, sH = 40, 41, 42, 43, 45, 46
sT0, sT1, sT2, sT3 = 47, 48, 49, 50
sXO = 51
sM = 52
sWL = 54
sYG = 55
sPO = 56
sOROW = 57
sOSTEP = 58
sPOS = 59
sPL, sPLS = 14, 15
sWG = 18
sTCH = 19
sMG, sSG = 3, 2
sWGID = 101
sSTAMP = 60
vOUT2, vLANE, vM = 0, 1, 2
vROW = 3
vWE, vWO_ = 12, 15
vWL, vPL, vOUT = 18, 19, 20
vDW = 21
vT = 24
vXO, vDP = 30, 31
vFR = 32; NB = 8
vACC = 64
vLA = 148
vLa = 172
vLp = 176
WV = 184
vOR1, vOR2, vOG1, vOG2 = 180, 181, 182, 183
SS = 208; OP = 16*SS; OB = WB
XREG = [144, 216, 228, 240]

e = Emit()
V = lambda n, k=1: R('v', n, k)
nstamp = [0]
def stamp(tag, rt=False):
    if not args.stamps: return
    if args.early and tag in ("S3 end","S4 end","S5 end","S6 end","row2 done","row5 done","row8 done","end") and not rt: return
    if not args.early and tag.startswith("E:"): return
    SKIPST = ("row5 done", "row8 done", "S6 end")
    if tag in SKIPST: return
    k = nstamp[0]; nstamp[0] += 1
    assert sSTAMP + 2*k + 1 < 93
    e.raw(f"{'s_memrealtime' if rt else 's_memtime'} s[{sSTAMP+2*k}:{sSTAMP+2*k+1}]")

def wreg(j, dip, t):
    idx = (dip*3 + t)*4
    if j < 7: return ('a', 36*j + idx)
    return ('v', WV + 36*(j-7) + idx)
def wlreg(t, s): return ('v', WV + (t*3 + s)*4)
def acc(o, t): return ('v', vACC + 12*o + 4*t)
def xreg(n, s): return ('a', XREG[n] + 4*s)

lab = [0]
def newlabel(p="L"):
    lab[0] += 1; return f"{p}_{lab[0]}"
class Region:
    def __init__(self, cmp, drain=True): self.cmp = cmp; self.drain = drain
    def __enter__(self):
        self.l = newlabel("Lskip")
        e.salu(self.cmp)
        e.raw(f"s_cbranch_scc0 {self.l}")
        e.region_begin()
    def __exit__(self, *a):
        e.region_end(self.drain)
        e.label(self.l)
def if_else(cmp, fa, fb_):
    le, lj = newlabel("Lelse"), newlabel("Ljoin")
    e.salu(cmp); e.raw(f"s_cbranch_scc0 {le}")
    s0 = e.snapshot()
    fa(); e.raw(f"s_branch {lj}")
    sa = e.snapshot(); e.restore(s0)
    e.label(le); fb_()
    sb = e.snapshot(); e.label(lj); e.merge(sa, sb)
vq = []
def vm_issue(tag): vq.append(tag)
def vm_wait(*tags):
    last = max(i for i, t in enumerate(vq) if t in tags)
    e.wait_vm(len(vq) - 1 - last)
def run(ops):
    for f in ops: f()
content = {}
def setc(regs, tag):
    for r in regs: content[r] = tag
def chk(regs, tag):
    for r in regs: assert content.get(r) == tag, (r, content.get(r), tag)

hdr = open("standalone__detection_seg_fpn_lateral__vision.s.ref").read().split("\n")
out = []
for l in hdr:
    if l.startswith("; @launch"): break
    out.append(l)
out.append(f"; @launch grid=(256,1,1) block=(256,1,1) lds={LDS}")
out.append('.amdgcn_target "amdgcn-amd-amdhsa--gfx950"')
out.append(".text")
out.append(f".globl {args.name}")
out.append(".p2align 8")
out.append(f".type {args.name},@function")
out.append(f"{args.name}:")

stamp("start"); stamp("start", rt=True)
e.salu("s_cmpk_ge_u32 s2, 256")
e.raw("s_cbranch_scc1 L_end")
e.raw("s_load_dwordx8 s[4:11], s[0:1], 0")
e.raw("s_load_dwordx2 s[12:13], s[0:1], 32")
if args.t2:
    e.raw("s_getpc_b64 s[94:95]")
    e.label("L_pc0")
    e.salu(f"s_lshr_b32 s93, s2, 3")
    e.salu(f"s_mulk_i32 s93, {64*args.t2}")
    e.salu(f"s_min_u32 s93, s93, L_end-L_pc0-{616 + 64*(args.t2-1)}")
    e.salu("s_add_u32 s94, s94, s93")
    e.salu("s_addc_u32 s95, s95, 0")
    for k in range(args.t2): e.raw(f"s_load_dword s93, s[94:95], {616 + 64*k}")
if args.stamps:
    e.raw("s_load_dwordx2 s[16:17], s[0:1], 48")
    e.salu(f"s_mov_b32 s{sWGID}, s2")
e.valu("v_lshrrev_b32 v24, 6, v0", w=V(24), r=V(0))
e.valu(f"v_and_b32 v{vLANE}, 63, v0", w=V(vLANE), r=V(0))
e.valu(f"v_readfirstlane_b32 s{sW}, v24", r=V(24), sw=[sW], rfl=True)
e.salu(f"s_lshr_b32 s{sTCH}, s2, 3")
e.salu(f"s_mov_b32 s98, s{sTCH}")
e.salu(f"s_and_b32 s{sT2}, s2, 1")
e.salu(f"s_lshl_b32 s{sT2}, s{sT2}, 3")
e.salu(f"s_and_b32 s{sT3}, s{sTCH}, 7")
e.salu(f"s_add_u32 s{sTY}, s{sT2}, s{sT3}")
e.salu(f"s_and_b32 s{sT2}, s2, 6")
e.salu(f"s_lshl_b32 s{sT2}, s{sT2}, 1")
e.salu(f"s_lshr_b32 s{sT3}, s2, 6")
e.salu(f"s_add_u32 s{sT2}, s{sT2}, s{sT3}")
e.salu(f"s_mulk_i32 s{sTCH}, {41*128}")
e.salu(f"s_mul_i32 s{sX0}, s{sT2}, 14")
e.salu(f"s_mul_i32 s{sY0}, s{sTY}, 14")
e.salu(f"s_lshr_b32 s{sG}, s{sW}, 1", sr=[sW])
e.salu(f"s_and_b32 s{sH}, s{sW}, 1")
e.salu(f"s_mul_i32 s{sSG}, s{sG}, -2")
e.salu(f"s_add_u32 s{sSG}, s{sSG}, 1")
e.salu(f"s_mul_i32 s{sYG}, s{sG}, 15")
e.salu(f"s_add_u32 s{sYG}, s{sYG}, s{sY0}")
e.salu(f"s_sub_u32 s{sYG}, s{sYG}, 1")
e.salu(f"s_lshr_b32 s{sPO}, s{sY0}, 1")
e.salu(f"s_lshl_b32 s{sT1}, s{sG}, 3")
e.salu(f"s_add_u32 s{sPO}, s{sPO}, s{sT1}")
e.salu(f"s_sub_u32 s{sPO}, s{sPO}, 1")
e.salu(f"s_mulk_i32 s{sPO}, {CROWB}")
e.salu(f"s_mov_b32 s{sPOS}, s{sSG}")
e.salu(f"s_mulk_i32 s{sPOS}, {CROWB}")
e.salu(f"s_lshl_b32 s{sPLS}, s{sSG}, 11")
e.salu(f"s_lshl_b32 s{sPL}, s{sG}, 4")
e.salu(f"s_add_u32 s{sPL}, s{sPL}, s{sH}")
e.salu(f"s_add_u32 s{sPL}, s{sPL}, {PB // 1024}")
e.salu(f"s_lshl_b32 s{sPL}, s{sPL}, 10")
assert PB % 1024 == 0 and PB // 1024 <= 64
e.valu(f"v_mov_b32 v29, {INV:#x}", w=V(29))
vD0 = vFR
e.valu(f"v_lshlrev_b32 v{vD0}, 4, v{vLANE}", w=V(vD0), r=V(vLANE))
e.valu(f"v_and_b32 v25, 32, v{vLANE}", w=V(25), r=V(vLANE))
e.valu(f"v_xor_b32 v{vD0+1}, v25, v{vD0}", w=V(vD0+1), r=V(25)+V(vD0))
e.valu(f"v_xor_b32 v{vD0+2}, 32, v{vD0}", w=V(vD0+2), r=V(vD0))
e.valu(f"v_lshlrev_b32 v{vD0+4}, 7, v{vLANE}", w=V(vD0+4), r=V(vLANE))
e.salu(f"s_sub_u32 s{sT1}, s{sX0}, 1")
e.salu(f"s_movk_i32 s{sT0}, 192")
e.valu(f"v_and_b32 v24, 15, v{vLANE}", w=V(24), r=V(vLANE))
e.valu(f"v_lshrrev_b32 v25, 4, v{vLANE}", w=V(25), r=V(vLANE))
e.valu(f"v_add_u32 v27, s{sT1}, v24", w=V(27), r=V(24))
e.valu("v_cmp_gt_u32 vcc, 224, v27", r=V(27), sw=["vcc"])
e.valu(f"v_mul_u32_u24 v28, s{sT0}, v27", w=V(28), r=V(27))
e.valu("v_lshl_add_u32 v28, v25, 4, v28", w=V(28), r=V(25)+V(28))
e.valu(f"v_cndmask_b32 v{vXO}, v29, v28, vcc", w=V(vXO), r=V(29)+V(28), sr=["vcc"])
e.salu(f"s_cmp_eq_u32 s{sT2}, 0")
e.salu(f"s_cselect_b32 s{sT1}, s{sT0}, 0")
e.salu(f"s_cmp_eq_u32 s{sT2}, 15")
e.salu(f"s_cselect_b32 s{sT3}, s{sT0}, s{sT1}")
e.salu(f"s_sub_u32 s{sT3}, {9*192}, s{sT3}")
e.salu(f"s_lshl_b32 s{sM}, s{sH}, 10")
e.salu(f"s_sub_u32 s{sM}, s{sM}, s{sT1}")
e.valu(f"v_add_u32 v26, s{sM}, v{vD0}", w=V(26), r=V(vD0))
e.valu(f"v_cmp_gt_u32 vcc, s{sT3}, v26", r=V(26), sw=["vcc"])
e.salu(f"s_mulk_i32 s{sT2}, {7*192}")
e.salu(f"s_add_u32 s{sT2}, s{sT2}, s{sT1}")
e.salu(f"s_sub_u32 s{sT2}, s{sT2}, s{sT0}")
e.valu(f"v_add_u32 v26, s{sT2}, v26", w=V(26), r=V(26))
e.valu(f"v_cndmask_b32 v{vDP}, v29, v26, vcc", w=V(vDP), r=V(29)+V(26), sr=["vcc"])
e.salu(f"s_mov_b32 s{SF+3}, 0x20000")
e.salu(f"s_mov_b32 s{SF+2}, {FINE_B}")
e.salu(f"s_mov_b32 s{SP+2}, {COARSE_B}")
e.salu(f"s_movk_i32 s{SW0+2}, {WLAT_B}")
e.salu(f"s_mov_b32 s{SWO+2}, {WOUT_B}")
for srd in (SP, SW0, SWO): e.salu(f"s_mov_b32 s{srd+3}, s{SF+3}")
e.salu(f"s_mov_b32 s{sT3}, s{sW}")
e.salu(f"s_mulk_i32 s{sT3}, 6144")
stamp("E:pre-kernarg-wait")
e.raw("s_waitcnt lgkmcnt(0)")
stamp("E:kernarg")
for srd, p in ((SW0, 8), (SWO, 10), (SF, 4), (SP, 6)):
    e.salu(f"s_mov_b64 s[{srd}:{srd+1}], s[{p}:{p+1}]")

GSLOT = {0: 2, 1: 0, 2: 2, 3: 0, 4: 3}
def slot_of(j): return 0 if j < 0 else GSLOT[j // 2] + (j % 2)
def group_ops(G):
    ops = []
    cnt = G < 4
    for blk in range(3):
        def f(blk=blk):
            e.salu(f"s_add_u32 m0, s{sWL}, {GSLOT[G]*WS + blk*6144}", m0=True)
            e.salu(f"s_add_u32 s{sT2}, s{sWG}, {2*G*6144 + blk*55296}")
            e.vmem(f"buffer_load_dwordx4 v{vDW}, s[{SWO}:{SWO+3}], s{sT2} offen lds", r=V(vDW), dma=True)
            if cnt: vm_issue(f"G{G}")
        ops.append(f)
        for p in (1, 2):
            def f(p=p):
                e.vmem(f"buffer_load_dwordx4 v{vDW+p}, s[{SWO}:{SWO+3}], s{sT2} offen offset:{1024*p} lds", r=V(vDW+p), dma=True)
                if cnt: vm_issue(f"G{G}")
            ops.append(f)
    return ops
def p_ops(crp, tag):
    def f():
        if crp == 0:
            e.salu(f"s_mov_b32 m0, s{sPL}", m0=True)
            e.salu(f"s_mul_i32 s{sT1}, s{sG}, 15")
            e.salu(f"s_cmp_eq_u32 s{sTY}, s{sT1}")
            e.salu(f"s_cselect_b32 s{SP+2}, 0, {COARSE_B}")
            e.salu(f"s_cselect_b32 s{sT0}, 0, s{sPO}")
        else:
            e.salu(f"s_mul_i32 s{sT1}, s{sPLS}, {crp}")
            e.salu(f"s_add_u32 m0, s{sPL}, s{sT1}", m0=True)
            e.salu(f"s_mul_i32 s{sT0}, s{sPOS}, {crp}")
            e.salu(f"s_add_u32 s{sT0}, s{sT0}, s{sPO}")
        e.vmem(f"buffer_load_dwordx4 v{vDP}, s[{SP}:{SP+3}], s{sT0} offen {args.inflag} lds", r=V(vDP), dma=True)
        vm_issue(tag)
        if crp == 0: e.salu(f"s_mov_b32 s{SP+2}, {COARSE_B}")
    return [f]
RB = [3, 5, 1, 7]; RH = [1, 1, 1, -7]
def x_ops(n):
    ops = []
    for s in range(3):
        def f(s=s):
            if s == 0:
                if RH[n] == 1: e.salu(f"s_add_u32 s{sXO}, s{sH}, {RB[n]}")
                else:
                    e.salu(f"s_mul_i32 s{sXO}, s{sH}, {RH[n]}")
                    e.salu(f"s_add_u32 s{sXO}, s{sXO}, {RB[n]}")
                e.salu(f"s_mul_i32 s{sXO}, s{sXO}, s{sSG}")
                e.salu(f"s_add_u32 s{sXO}, s{sXO}, s{sYG}")
                if n == 3:
                    e.salu(f"s_cmp_ge_u32 s{sXO}, 224")
                    e.salu(f"s_cselect_b32 s{SF+2}, 0, {FINE_B}")
                    e.salu(f"s_cselect_b32 s{sXO}, 0, s{sXO}")
                e.salu(f"s_mul_i32 s{sXO}, s{sXO}, {ROWB}")
            k, r0 = xreg(n, s)
            e.vload(f"buffer_load_dwordx4 {rs(k, r0, 4)}, v{vXO}, s[{SF}:{SF+3}], s{sXO} offen offset:{64*s} {args.inflag}", R(k, r0, 4), r=V(vXO))
            vm_issue(f"X{n}"); setc(R(k, r0, 4), ("x", n))
        ops.append(f)
    return ops

pass
def w1_a():
    for half in range(2):
        e.salu(f"s_add_u32 m0, s{sT3}, {WB + half*3072}", m0=True)
        if half: e.salu(f"s_addk_i32 s{sT3}, 3072")
        for p in range(3):
            e.vmem(f"buffer_load_dwordx4 v{vD0+p}, s[{SW0}:{SW0+3}], s{sT3} offen offset:{1024*p} lds", r=V(vD0+p), dma=True)
def w1_b():
    if not args.notouch:
        e.salu("s_mov_b32 exec_hi, 0x1ff")
        e.vload(f"buffer_load_dword v{vD0+5}, v{vD0+4}, s[{SWO}:{SWO+3}], s{sTCH} offen", V(vD0+5), r=V(vD0+4))
        e.salu("s_mov_b32 exec_hi, -1")
if_else(f"s_cmp_lt_u32 s{sW}, 3", w1_a, w1_b)
vm_issue("WL")
run(p_ops(2, "PA") + x_ops(0) + p_ops(3, "PB"))
stamp("E:W1 issued")

e.salu(f"s_mul_i32 s{sT3}, s{sH}, 3072")
for p in range(3):
    e.valu(f"v_add_u32 v{vDW+p}, s{sT3}, v{vD0+p}", w=V(vDW+p), r=V(vD0+p))
e.salu(f"s_mul_i32 s{sWG}, s{sG}, 6144")
e.salu(f"s_mul_i32 s{sWL}, s{sG}, {WS}")
e.salu(f"s_add_u32 s{sWL}, s{sWL}, s{sT3}")
e.salu(f"s_add_u32 s{sWL}, s{sWL}, {WB}")
g0 = group_ops(0)
run(g0[:3])
e.valu("v_lshrrev_b32 v26, 2, v24", w=V(26), r=V(24))
e.valu("v_lshl_add_u32 v26, v25, 3, v26", w=V(26), r=V(25)+V(26))
e.valu("v_mul_u32_u24 v26, 192, v26", w=V(26), r=V(26))
e.valu(f"v_and_b32 v27, 3, v{vLANE}", w=V(27), r=V(vLANE))
e.valu("v_and_b32 v28, 1, v25", w=V(28), r=V(25))
e.valu("v_lshlrev_b32 v28, 5, v28", w=V(28), r=V(28))
e.valu(f"v_lshlrev_b32 v{vWL}, 4, v27", w=V(vWL), r=V(27))
e.valu(f"v_xor_b32 v{vWL}, v{vWL}, v28", w=V(vWL), r=V(vWL)+V(28))
e.valu(f"v_add_u32 v{vWL}, v{vWL}, v26", w=V(vWL), r=V(vWL)+V(26))
e.valu(f"v_add_u32 v{vWL}, {WB}, v{vWL}", w=V(vWL), r=V(vWL))
e.valu("v_lshl_add_u32 v26, v27, 3, v26", w=V(26), r=V(27)+V(26))
e.salu(f"s_mul_i32 s{sT0}, s{sH}, 96")
e.salu(f"s_add_u32 s{sT0}, s{sT0}, {WB}")
e.valu(f"v_add_u32 v26, s{sT0}, v26", w=V(26), r=V(26))
e.salu(f"s_mul_i32 s{sT0}, s{sH}, -2")
e.salu(f"s_add_u32 s{sT0}, s{sT0}, 1")
e.valu(f"v_mul_i32_i24 v28, s{sT0}, v28", w=V(28), r=V(28))
e.valu("v_add_u32 v27, v26, v28", w=V(27), r=V(26)+V(28))
e.valu("v_sub_u32 v26, v26, v28", w=V(26), r=V(26)+V(28))
e.salu(f"s_mul_i32 s{sT0}, s{sG}, 12288")
e.salu(f"s_sub_u32 s{sT1}, 12288, s{sT0}")
e.valu(f"v_add_u32 v{vWE}, s{sT0}, v27", w=V(vWE), r=V(27))
e.valu(f"v_add_u32 v{vWE+1}, 6144, v27", w=V(vWE+1), r=V(27))
e.valu(f"v_add_u32 v{vWE+2}, s{sT1}, v27", w=V(vWE+2), r=V(27))
e.valu(f"v_add_u32 v{vWO_}, s{sT0}, v26", w=V(vWO_), r=V(26))
e.valu(f"v_add_u32 v{vWO_+1}, 6144, v26", w=V(vWO_+1), r=V(26))
e.valu(f"v_add_u32 v{vWO_+2}, s{sT1}, v26", w=V(vWO_+2), r=V(26))
e.valu(f"v_mul_u32_u24 v{vM}, {S}, v24", w=V(vM), r=V(24))
e.valu(f"v_lshl_add_u32 v{vM}, v25, 4, v{vM}", w=V(vM), r=V(25)+V(vM))
e.salu(f"s_mul_i32 s{sMG}, s{sG}, {15*MP}")
e.salu(f"s_mul_i32 s{sT1}, s{sSG}, {MP}")
e.valu(f"v_add_u32 v{vROW}, s{sMG}, v{vM}", w=V(vROW), r=V(vM))
for k in range(1, 9):
    e.valu(f"v_add_u32 v{vROW+k}, s{sT1}, v{vROW+k-1}", w=V(vROW+k), r=V(vROW+k-1))
e.salu(f"s_cmp_eq_u32 s{sH}, 1")
e.salu(f"s_cselect_b64 s[{sM}:{sM+1}], -1, 0")
for n in range(4):
    e.valu(f"v_cndmask_b32 v{vLa+n}, v{vROW+RB[n]}, v{vROW+RB[n]+RH[n]}, s[{sM}:{sM+1}]", w=V(vLa+n), r=V(vROW+RB[n])+V(vROW+RB[n]+RH[n]))
if args.zero:
    e.valu("v_cmp_lt_u32 vcc, 13, v24", r=V(24), sw=["vcc"])
    e.valu(f"v_add_u32 v26, {16*MP}, v{vM}", w=V(26), r=V(vM))
    for k in range(4): e.valu(f"v_mov_b32 v{vFR+8+k}, 0", w=V(vFR+8+k))
    for k in range(9):
        e.valu(f"v_cndmask_b32 v{vROW+k}, v{vROW+k}, v26, vcc", w=V(vROW+k), r=V(vROW+k)+V(26), sr=["vcc"])
    e.ds_write(f"ds_write_b128 v{vD0}, v[{vFR+8}:{vFR+11}] offset:{16*MP + 14*S}", V(vD0) + V(vFR+8, 4))
e.valu("v_add_u32 v26, 1, v24", w=V(26), r=V(24))
e.valu("v_lshrrev_b32 v26, 1, v26", w=V(26), r=V(26))
e.valu("v_mul_u32_u24 v26, 192, v26", w=V(26), r=V(26))
e.valu(f"v_lshl_add_u32 v26, v25, 4, v26", w=V(26), r=V(25)+V(26))
e.salu(f"s_lshl_b32 s{sT0}, s{sG}, 14")
e.salu(f"s_add_u32 s{sT0}, s{sT0}, {PB}")
e.valu(f"v_add_u32 v{vPL}, s{sT0}, v26", w=V(vPL), r=V(26))
for n, crp in enumerate((2, 3, 1)):
    e.salu(f"s_mul_i32 s{sT0}, s{sPLS}, {crp}")
    e.valu(f"v_add_u32 v{vLp+n}, s{sT0}, v{vPL}", w=V(vLp+n), r=V(vPL))
e.salu(f"s_mul_i32 s{sT0}, s{sPLS}, 4")
e.salu(f"s_cmp_eq_u32 s{sH}, 1")
e.salu(f"s_cselect_b32 s{sT0}, 0, s{sT0}")
e.valu(f"v_add_u32 v{vLp+3}, s{sT0}, v{vPL}", w=V(vLp+3), r=V(vPL))
e.valu(f"v_mul_u32_u24 v26, {SS}, v24", w=V(26), r=V(24))
e.salu(f"s_mul_i32 s{sT0}, s{sH}, 96")
e.salu(f"s_mul_i32 s{sT1}, s{sG}, {7*OP}")
e.salu(f"s_add_u32 s{sT1}, s{sT1}, {OB}")
e.salu(f"s_add_u32 s{sT0}, s{sT0}, s{sT1}")
e.valu(f"v_add_u32 v26, s{sT0}, v26", w=V(26), r=V(26))
e.valu("v_and_b32 v27, 1, v25", w=V(27), r=V(25))
e.valu("v_lshrrev_b32 v28, 1, v25", w=V(28), r=V(25))
e.valu(f"v_lshl_add_u32 v{vOUT}, v25, 3, v26", w=V(vOUT), r=V(25)+V(26))
e.valu("v_lshl_add_u32 v26, v27, 5, v26", w=V(26), r=V(27)+V(26))
e.valu(f"v_lshl_add_u32 v{vOUT2}, v28, 4, v26", w=V(vOUT2), r=V(28)+V(26))
e.salu(f"s_lshl_b32 s{sT0}, s{sH}, 6")
e.salu(f"s_mul_i32 s{sT2}, s{sH}, 24")
e.salu(f"s_add_u32 s{sT2}, s{sT2}, 128")
e.salu(f"s_mul_i32 s{sT3}, s{sX0}, 192")
for (sn, vr, vg) in ((sT0, vOR1, vOG1), (sT2, vOR2, vOG2)):
    e.valu(f"v_add_u32 v26, s{sn}, v{vLANE}", w=V(26), r=V(vLANE))
    e.valu("v_mul_u32_u24 v27, 5462, v26", w=V(27), r=V(26))
    e.valu("v_lshrrev_b32 v27, 16, v27", w=V(27), r=V(27))
    e.valu("v_lshlrev_b32 v26, 4, v26", w=V(26), r=V(26))
    e.valu(f"v_lshl_add_u32 v27, v27, 4, v26", w=V(27), r=V(27)+V(26))
    e.valu(f"v_add_u32 v{vr}, s{sT1}, v27", w=V(vr), r=V(27))
    e.valu(f"v_add_u32 v{vg}, s{sT3}, v26", w=V(vg), r=V(26))
e.salu(f"s_lshl_b32 s{sT0}, s{sH}, 3")
e.salu(f"s_sub_u32 s{sT0}, 24, s{sT0}")
e.valu(f"v_cmp_gt_u32 vcc, s{sT0}, v{vLANE}", r=V(vLANE), sw=["vcc"])
e.valu(f"v_cndmask_b32 v{vOG2}, v29, v{vOG2}, vcc", w=V(vOG2), r=V(29)+V(vOG2), sr=["vcc"])
e.valu(f"v_cndmask_b32 v{vOR2}, v{vOR1}, v{vOR2}, vcc", w=V(vOR2), r=V(vOR1)+V(vOR2), sr=["vcc"])
e.salu(f"s_mul_i32 s{sT0}, s{sG}, 13")
e.salu(f"s_add_u32 s{sT0}, s{sT0}, s{sY0}")
e.salu(f"s_mul_i32 s{sOROW}, s{sT0}, {ROWB}")
e.salu(f"s_mul_i32 s{sOSTEP}, s{sSG}, {ROWB}")

def pull_ops(j, order=(2, 1, 0)):
    slot = slot_of(j)
    ops = []
    if j < 0:
        for s in range(3):
            for t in range(6):
                for hh in range(2):
                    k, b = wlreg(t, s)
                    off = slot*WS + s*6144 + hh*768 + 64*(t >> 1) + 8*(t & 1)
                    def f(k=k, b=b, off=off, hh=hh):
                        e.ds_read(f"ds_read_b64_tr_b16 {rs(k, b+2*hh, 2)}, v{vWL} offset:{off}", R(k, b+2*hh, 2), V(vWL))
                        setc(R(k, b+2*hh, 2), "wl")
                    ops.append(f)
    else:
        for dip in order:
            for t in range(3):
                for hh in range(2):
                    k, b = wreg(j, dip, t)
                    va = (vWE if t % 2 == 0 else vWO_) + dip
                    off = slot*WS + hh*768 + 32*t
                    def f(k=k, b=b, off=off, hh=hh, va=va):
                        e.ds_read(f"ds_read_b64_tr_b16 {rs(k, b+2*hh, 2)}, v{va} offset:{off}", R(k, b+2*hh, 2), V(va))
                        setc(R(k, b+2*hh, 2), ("w", j))
                    ops.append(f)
    return ops
def pull_last(j): return R(*wreg(j, 0, 2), 4)

def mix(a, b):
    if not a: return list(b)
    if not b: return list(a)
    res = []; bi = 0
    for n, x in enumerate(a):
        res.append(x)
        tgt = ((n + 1) * len(b)) // len(a)
        while bi < tgt: res.append(b[bi]); bi += 1
    return res + list(b[bi:])
NOP = lambda: None
def pad(ops, n): return list(ops) + [NOP] * max(0, n - len(ops))
def seg(main, fill):
    nm, nf = len(main), len(fill)
    fi = 0
    for n, m in enumerate(main):
        m()
        tgt = -(-(n + 1) * nf // nm) if nm else nf
        while fi < min(tgt, nf): fill[fi](); fi += 1
    while fi < nf: fill[fi](); fi += 1

vLB = 124
LSET = [vLA, vLA, vLA, vLA]
def lat_reads(n):
    A = LSET[n]
    ops = []
    for u in range(3):
        def f(u=u):
            e.ds_read(f"ds_read_b128 v[{A+8*u+4}:{A+8*u+7}], v{vLp+n} offset:{64*u}", V(A+8*u+4, 4), V(vLp+n))
            setc(V(A+8*u+4, 4), ("p", n))
        ops.append(f)
    return ops
def lat_unpack(n):
    A = LSET[n]
    ops = []
    for u in range(3):
        a = A + 8*u
        sq = [(a+0, a+4, 0), (a+1, a+4, 1), (a+2, a+5, 0), (a+3, a+5, 1),
              (a+4, a+6, 0), (a+5, a+6, 1), (a+6, a+7, 0), (a+7, a+7, 1)]
        for (d, s_, hi) in sq:
            def f(d=d, s_=s_, hi=hi):
                assert content[('v', s_)][0] == "p"
                tg = ("pu", content[('v', s_)][1])
                content[('v', d)] = tg
                if hi: e.valu(f"v_and_b32 v{d}, 0xffff0000, v{s_}", w=V(d), r=V(s_))
                else:  e.valu(f"v_lshlrev_b32 v{d}, 16, v{s_}", w=V(d), r=V(s_))
            ops.append(f)
    return ops
def lat_mfma(n, umajor=False):
    A = LSET[n]
    ops = []
    order = [(s, t) for u in range(3) for s in range(3) for t in (2*u, 2*u+1)] if umajor else [(s, t) for s in range(3) for t in range(6)]
    for (s, t) in order:
        def f(s=s, t=t):
            chk(R(*wlreg(t, s), 4), "wl"); chk(R(*xreg(n, s), 4), ("x", n)); chk(V(A+4*t, 4), ("pu", n))
            e.mfma(('v', A+4*t), wlreg(t, s), xreg(n, s), ('v', A+4*t))
        ops.append(f)
    return ops
def lat_store(n):
    A = LSET[n]
    ops = []
    for u in range(3):
        for d in range(4):
            def f(u=u, d=d):
                e.valu(f"v_cvt_pk_bf16_f32 v{A+8*u+d}, v{A+8*u+2*d}, v{A+8*u+2*d+1}", w=V(A+8*u+d), r=V(A+8*u+2*d, 2))
            ops.append(f)
        def f(u=u): e.ds_write(f"ds_write_b128 v{vLa+n}, v[{A+8*u}:{A+8*u+3}] offset:{64*u}", V(vLa+n) + V(A+8*u, 4))
        ops.append(f)
    return ops

inited = set(); done = set()
def conv_mfma(j, rp, dip, t, fr):
    o = rp - dip
    def f():
        first = (o, t) not in inited
        inited.add((o, t))
        chk(R(*wreg(j, dip, t), 4), ("w", j)); chk(V(fr, 4), ("f", rp, j))
        done.add((rp, j, dip, t))
        e.mfma(acc(o, t), wreg(j, dip, t), ('v', fr), None if first else acc(o, t))
    return f
def frag_read(j, rp, fr):
    dj, s = divmod(j, 3)
    def f():
        e.ds_read(f"ds_read_b128 v[{fr}:{fr+3}], v{vROW+rp} offset:{dj*S + 64*s}", V(fr, 4), V(vROW+rp))
        setc(V(fr, 4), ("f", rp, j))
    return f
def epilogue_ops(o):
    ops = []
    a = vACC + 12*o
    cv = [(a+0, a+0), (a+1, a+2), (a+2, a+4), (a+3, a+6), (a+8, a+8), (a+9, a+10)]
    for (d, s_) in cv:
        def f(d=d, s_=s_):
            assert all((o+dp, j, dp, t) in done for dp in range(3) for j in range(9) for t in range(3)), o
            e.valu(f"v_cvt_pk_bf16_f32 v{d}, v{s_}, v{s_+1}", w=V(d), r=V(s_, 2))
        ops.append(f)
    for d in range(2):
        def f(d=d):
            e.valu(f"v_permlane16_swap_b32 v{a+d}, v{a+2+d}", w=V(a+d)+V(a+2+d), r=V(a+d)+V(a+2+d), perm=True)
        ops.append(f)
    ops.append(lambda: e.ds_write(f"ds_write_b64 v{vOUT}, v[{a+8}:{a+9}] offset:{o*OP + 64}", V(a+8, 2) + V(vOUT)))
    ops.append(lambda: e.ds_write(f"ds_write_b128 v{vOUT2}, v[{a}:{a+3}] offset:{o*OP}", V(a, 4) + V(vOUT2)))
    return ops
def stf(o): return "" if o >= 7-args.lastplain else args.stflag
def store_ops(o):
    a = vACC + 12*o
    ops = []
    ops.append(lambda: e.ds_read(f"ds_read_b128 v[{a}:{a+3}], v{vOR1} offset:{o*OP}", V(a, 4), V(vOR1)))
    ops.append(lambda: e.ds_read(f"ds_read_b128 v[{a+4}:{a+7}], v{vOR2} offset:{o*OP}", V(a+4, 4), V(vOR2)))
    def so():
        e.salu(f"s_mul_i32 s{sT3}, s{sOSTEP}, {o}")
        e.salu(f"s_add_u32 s{sT3}, s{sT3}, s{sOROW}")
    ops += [so, NOP, NOP, NOP, NOP]
    if not args.nostore:
        ops.append(lambda: e.vmem(f"buffer_store_dwordx4 v[{a}:{a+3}], v{vOG1}, s[{SO}:{SO+3}], s{sT3} offen {stf(o)}",
                                  r=V(a, 4) + V(vOG1), wide_data=V(a, 4)))
        ops.append(NOP)
        ops.append(lambda: e.vmem(f"buffer_store_dwordx4 v[{a+4}:{a+7}], v{vOG2}, s[{SO}:{SO+3}], s{sT3} offen {stf(o)}",
                                  r=V(a+4, 4) + V(vOG2), wide_data=V(a+4, 4)))
    return ops
wq = []
def wait_writes():
    last = -1
    for i, d in enumerate(e.lgkm):
        if not d: last = i
    if last >= 0:
        n = len(e.lgkm) - 1 - last
        e.raw(f"s_waitcnt lgkmcnt({n})"); e.lgkm = e.lgkm[last+1:]

def dips_of(rp): return [d for d in (2, 1, 0) if 0 <= rp - d <= 6]
vis_row = {3: 2, 4: 2, 5: 3, 6: 3, 1: 4, 2: 4, 0: 5, 7: 5, 8: 5}
items = []
groups = {}
def add(name, rps, js, rowmajor=False):
    g = groups.setdefault(name, [])
    lst = [(rp, j) for rp in rps for j in js] if rowmajor else [(rp, j) for j in js for rp in rps]
    for rp, j in lst:
        g.append(len(items)); items.append((rp, j))
RA_, RB_, RC_, RD_ = (3, 4), (5, 6), (2, 1), (7, 8, 0)
add("2a", RA_, (0,)); add("2b", (3,), (1,)); add("2c", (4,), (1,))
add("3a", RB_, (0,)); add("3b", RB_, (1,)); add("3c", RA_, (2,))
add("4a", RB_, (2,)); add("4b", RA_, (3,))
add("5a", RB_, (3,)); add("5b", RC_, (0,))
add("6a", RC_, (1,)); add("6b", RC_, (2, 3)); add("6b", RD_, (0,)); add("6c", RD_, (1, 2, 3))
add("7a", (0, 1), (4, 5, 6, 7), rowmajor=True)
add("8_2a", (2,), (4, 5)); add("8_2b", (2,), (6, 7)); add("8_2c", (0, 1, 2), (8,))
for r in range(3, 9): add(f"8_{r}", (r,), (4, 5, 6, 7, 8))
assert sorted(items) == sorted((r, j) for r in range(9) for j in range(9))
fr_done = set()
PF = args.pf
def fb(n): return vFR + 4*(n % NB)
def item_main(n):
    rp, j = items[n]
    return [conv_mfma(j, rp, dip, t, fb(n)) for dip in dips_of(rp) for t in range(3)]
def prefetch_ops(n, step, depth=None):
    ops = []
    ahead = 0
    lim = 9*(PF if depth is None else depth)
    for m in range(n, min(n + NB - 1, len(items))):
        rp, j = items[m]
        if m > n and ahead >= lim + 1: break
        if m not in fr_done:
            if vis_row[rp] > step: break
            fr_done.add(m); ops.append(frag_read(j, rp, fb(m)))
        ahead += 3*len(dips_of(rp))
    return ops
def conv_seg(names, step, fill, depth=None):
    idx = [n for nm_ in names for n in groups[nm_]]
    main = []; mk = {}
    for n in idx:
        assert vis_row[items[n][0]] <= step
        mk[len(main)] = n; main += item_main(n)
    nm, nf = len(main), len(fill)
    fi = 0
    for p, m in enumerate(main):
        if p in mk:
            n = mk[p]
            if n not in fr_done: run(prefetch_ops(n, step, 0)[:1])
            m(); run(prefetch_ops(n, step, depth))
        else: m()
        tgt = -(-(p + 1) * nf // nm)
        while fi < min(tgt, nf): fill[fi](); fi += 1
    while fi < nf: fill[fi](); fi += 1

e.salu(f"s_mov_b64 s[{SO}:{SO+1}], s[12:13]")
e.salu(f"s_mov_b32 s{SO+2}, {FINE_B}")
e.salu(f"s_mov_b32 s{SO+3}, 0x20000")
if args.ctouch:
    e.raw("s_getpc_b64 s[96:97]")
    e.label("L_pc")
    e.salu(f"s_lshl_b32 s98, s98, 9")
    e.salu("s_min_u32 s98, s98, L_end-L_pc-512")
    e.salu("s_add_u32 s96, s96, s98")
    e.salu("s_addc_u32 s97, s97, 0")
    for k in range(8 if args.c64 else 4): e.raw(f"s_load_dword s99, s[96:97], {(64 if args.c64 else 128)*k}")
stamp("E:setup done"); vm_wait("WL"); stamp("B0 wait done"); e.barrier()
run(mix(pull_ops(-1), g0[3:]))
pass
vm_wait("PA"); e.wait_lgkm0(); pass; e.barrier()
run(lat_reads(0))
run(x_ops(1))
run(lat_unpack(0))
g1 = group_ops(1)
def lateral_first(n, fill_a, fill_b, stores=True):
    lm = lat_mfma(n); ls = lat_store(n)
    idx = [i for i, t in enumerate(vq) if t == f"X{n}"]
    for s_ in range(3):
        e.wait_vm(len(vq) - 1 - idx[s_])
        if s_ == 0: stamp(f"X{n} landed")
        if s_ < 2: seg(lm[6*s_:6*s_+6], (fill_a, fill_b)[s_])
    run(lm[12:])
    if stores: run(ls)
lateral_first(0, [], [], stores=False)
run(g1[:3])
run(lat_store(0))
vm_wait("G0"); e.wait_lgkm0(); stamp("S1 end"); e.barrier()
p0 = pull_ops(0); p1 = pull_ops(1); u1 = lat_unpack(1)
run(prefetch_ops(groups["2a"][0], 2, 1)); run(p0[:6])
m2 = [conv_mfma(0, items[n][0], d, t, fb(n)) for d in (2, 1, 0) for n in groups["2a"] for t in range(3)]
seg(m2[:6], p0[6:])
seg(m2[6:], mix(lat_reads(1) + prefetch_ops(groups["2b"][0], 2, 1) + p1[:12], g1[3:6]))
seg(item_main(groups["2b"][0])[:6], mix(p1[12:], g1[6:]) + u1[:4])
conv_seg_rest = item_main(groups["2b"][0])[6:]
seg(conv_seg_rest, u1[4:12])
run(u1[12:] + p_ops(1, "PC") + x_ops(2))
lateral_first(1, [], [], stores=False)
conv_seg(["2c"], 2, lat_store(1))
vm_wait("G1"); e.wait_lgkm0(); stamp("S2 end"); e.barrier()
g2 = group_ops(2); g3 = group_ops(3)
run(prefetch_ops(groups["3a"][0], 3, 1))
conv_seg(["3a"], 3, mix(pull_ops(2), p_ops(4, "PD") + p_ops(0, "PD") + x_ops(3)[:2]))
conv_seg(["3b"], 3, mix(pull_ops(3), x_ops(3)[2:]))
conv_seg(["3c"], 3, [])
vm_wait("X2"); e.wait_for(pull_last(3)); stamp("S3 end"); e.barrier()
conv_seg(["4a"], 3, lat_reads(2) + lat_unpack(2))
seg(lat_mfma(2), g2[:3])
conv_seg(["4b"], 3, lat_store(2) + g2[3:6])
vm_wait("X3"); e.wait_lgkm0(); stamp("S4 end"); e.barrier()
conv_seg(["5a"], 4, lat_reads(3) + mix(lat_unpack(3), g2[6:]))
seg(lat_mfma(3), g3[:4])
conv_seg(["5b"], 4, lat_store(3) + g3[4:6])
conv_seg(["6a"], 4, g3[6:])
vm_wait("G2"); e.wait_lgkm0(); stamp("S5 end"); e.barrier()
def g4blk(k):
    def f():
        with Region(f"s_cmp_eq_u32 s{sG}, 0"): run(group_ops(4)[3*k:3*k+3])
    return f
conv_seg(["6b"], 5, pull_ops(5) + pull_ops(4))
vm_wait("G3"); e.wait_for(pull_last(4)); stamp("S6 end"); e.barrier()
conv_seg(["6c"], 5, mix(pull_ops(6) + pull_ops(7), [g4blk(0), g4blk(1), g4blk(2), NOP]))
conv_seg(["7a"], 5, [])
e.wait_vm(0); e.wait_for(pull_last(7)); stamp("S7 end"); e.barrier()
conv_seg(["8_2a"], 5, pull_ops(8))
conv_seg(["8_2b", "8_2c"], 5, [])
stamp("row2 done")
def halves(r):
    g = groups[f"8_{r}"]; h = (len(g) + 1)//2
    groups[f"8_{r}x"] = g[:h]; groups[f"8_{r}y"] = g[h:]
for r in range(3, 9): halves(r)
if args.fin == 0:
    for r in range(3, 9):
        o = r - 3
        conv_seg([f"8_{r}x"], 5, epilogue_ops(o) + [NOP]*6)
        wait_writes(); e.barrier()
        conv_seg([f"8_{r}y"], 5, store_ops(o))
    run(epilogue_ops(6))
else:
    conv_seg(["8_3"], 5, epilogue_ops(0))
    conv_seg(["8_4x"], 5, epilogue_ops(1) + [NOP]*6)
    wait_writes(); e.barrier()
    conv_seg(["8_4y"], 5, store_ops(0))
    conv_seg(["8_5x"], 5, store_ops(1))
    conv_seg(["8_5y"], 5, epilogue_ops(2))
    conv_seg(["8_6x"], 5, epilogue_ops(3) + [NOP]*6)
    wait_writes(); e.barrier()
    conv_seg(["8_6y"], 5, store_ops(2))
    conv_seg(["8_7x"], 5, epilogue_ops(4) + store_ops(3))
    conv_seg(["8_7y"], 5, [])
    g8 = groups["8_8"]
    run(prefetch_ops(g8[0], 5, 9))
    m8 = [conv_mfma(items[n][1], 8, 2, t, fb(n)) for t in range(3) for n in g8]
    ep5 = epilogue_ops(5)
    seg(m8[:8], ep5)
    wait_writes(); e.barrier()
    s4 = [f for f in store_ops(4) if f is not NOP]; s5 = [f for f in store_ops(5) if f is not NOP]
    seg(m8[8:], s4[:2] + s5[:2] + s4[2:])
    EP6_PARTIAL = True
    run(epilogue_ops(6))
    run(s5[2:])
wait_writes(); e.barrier()
run([f for f in store_ops(6) if f is not NOP])
stamp("end")
if args.stamps:
    e.raw("s_waitcnt vmcnt(0)")
    stamp("stores done"); stamp("end", rt=True)
    e.raw("s_waitcnt lgkmcnt(0)")
    e.salu(f"s_lshl_b32 s{sT0}, s{sWGID}, 2")
    e.salu(f"s_add_u32 s{sT0}, s{sT0}, s{sW}")
    e.salu(f"s_lshl_b32 s{sT0}, s{sT0}, 8")
    e.salu("s_mov_b32 s20, s16"); e.salu("s_mov_b32 s21, s17"); e.salu("s_mov_b32 s22, 0x100000"); e.salu("s_mov_b32 s23, 0x20000")
    e.valu("v_mov_b32 v24, 0", w=V(24))
    e.raw("s_mov_b64 exec, 1")
    for k in range(nstamp[0]):
        e.valu(f"v_mov_b32 v26, s{sSTAMP+2*k}", w=V(26))
        e.valu(f"v_mov_b32 v27, s{sSTAMP+2*k+1}", w=V(27))
        e.vmem(f"buffer_store_dwordx2 v[26:27], v24, s[20:23], s{sT0} offen offset:{8*k}", r=V(24)+V(26, 2))
        e.raw("s_nop 1")
e.label("L_end")
e.raw("s_endpgm")

out.append(e.text())
out.append('.section .rodata,"a"')
out.append(".p2align 6")
out.append(f".amdhsa_kernel {args.name}")
out.append("  .amdhsa_next_free_vgpr 512")
out.append("  .amdhsa_next_free_sgpr 102")
out.append("  .amdhsa_accum_offset 256")
out.append("  .amdhsa_group_segment_fixed_size 0")
out.append("  .amdhsa_kernarg_size 56")
out.append("  .amdhsa_user_sgpr_count 2")
out.append("  .amdhsa_user_sgpr_kernarg_segment_ptr 1")
out.append("  .amdhsa_system_sgpr_workgroup_id_x 1")
out.append(".end_amdhsa_kernel")
print("\n".join(out))
nm = sum(1 for l in e.lines if "v_mfma" in l)
sys.stderr.write(f"nops={e.nops} waits={e.waits} stamps={nstamp[0]} lines={len(e.lines)} mfma={nm} vq={len(vq)} lds={LDS}\n")
```

```python
def R(kind, base, n=1):
    return [(kind, base + i) for i in range(n)]
def rs(kind, base, n=1):
    return f"{kind}{base}" if n == 1 else f"{kind}[{base}:{base+n-1}]"

class Emit:
    def __init__(self):
        self.lines = []
        self.slot = 0
        self.lgkm = []
        self.mfma_w = {}
        self.mfma_wt = {}
        self.mfma_c = {}
        self.valu_w = {}
        self.valu_sw = {}
        self.store_r = {}
        self.m0_w = -100
        self.nops = 0
        self.waits = 0
        self.refill = 14
        self.nds = 0
    def _out(self, text, states=1):
        self.lines.append("    " + text)
        self.slot += states
    def comment(self, t): self.lines.append("    ; " + t)
    def label(self, t): self.lines.append(t + ":")
    def _pad_to(self, need_slot):
        while self.slot < need_slot:
            n = min(16, need_slot - self.slot)
            self._out(f"s_nop {n-1}", n)
            self.nops += n
    def _lgkm_for(self, regs):
        regs = set(regs)
        last = -1
        for i, d in enumerate(self.lgkm):
            if d & regs: last = i
        if last >= 0:
            n = len(self.lgkm) - 1 - last
            self._out(f"s_waitcnt lgkmcnt({n})")
            self.waits += 1
            self.lgkm = self.lgkm[last+1:]
    def wait_lgkm0(self):
        self._out("s_waitcnt lgkmcnt(0)")
        self.lgkm = []
    def wait_vm(self, n):
        self._out(f"s_waitcnt vmcnt({n})")
    def _need_mfma_w(self, regs, dist):
        need = 0
        for r in regs:
            if r in self.mfma_w: need = max(need, self.mfma_w[r] + 1 + dist)
        return need
    def mfma(self, D, A, B, C):
        d = R(D[0], D[1], 4); a = R(A[0], A[1], 4); b = R(B[0], B[1], 4)
        c = R(C[0], C[1], 4) if C is not None else []
        self._lgkm_for(d + a + b + c)
        need = 0
        for r in a + b + c:
            if r in self.valu_w: need = max(need, self.valu_w[r] + 1 + 2)
        need = max(need, self._need_mfma_w(a + b, 8))
        for r in c:
            if r in self.mfma_w and self.mfma_wt[r] != C:
                need = max(need, self.mfma_w[r] + 1 + 6)
        self._pad_to(need)
        cs = rs(C[0], C[1], 4) if C is not None else "0"
        s = self.slot
        self._out(f"v_mfma_f32_16x16x32_bf16 {rs(D[0],D[1],4)}, {rs(A[0],A[1],4)}, {rs(B[0],B[1],4)}, {cs}")
        for r in d:
            self.mfma_w[r] = s; self.mfma_wt[r] = D
            self.valu_w.pop(r, None)
        for r in c: self.mfma_c[r] = s
    def valu(self, text, w=(), r=(), sw=(), sr=(), perm=False, rfl=False):
        w = list(w); r = list(r)
        self._lgkm_for(w + r)
        need = self._need_mfma_w(w + r, 8)
        for x in w:
            if x in self.mfma_c: need = max(need, self.mfma_c[x] + 1 + 3)
            if x in self.store_r: need = max(need, self.store_r[x] + 1 + 2)
        for x in sr:
            if x in self.valu_sw: need = max(need, self.valu_sw[x] + 1 + 2)
        if perm:
            for x in r:
                if x in self.valu_w: need = max(need, self.valu_w[x] + 1 + 2)
        if rfl:
            for x in r:
                if x in self.valu_w: need = max(need, self.valu_w[x] + 1 + 1)
        self._pad_to(need)
        s = self.slot
        self._out(text)
        for x in w:
            self.valu_w[x] = s; self.mfma_w.pop(x, None)
        for x in sw: self.valu_sw[x] = s
    def salu(self, text, sr=(), m0=False):
        need = 0
        for x in sr:
            if x in self.valu_sw: need = max(need, self.valu_sw[x] + 1 + 4)
        self._pad_to(need)
        s = self.slot
        self._out(text)
        if m0: self.m0_w = s
    def ds_read(self, text, dst, addr):
        dst = list(dst)
        self._lgkm_for(dst + list(addr))
        need = self._need_mfma_w(dst + list(addr), 8)
        for x in dst:
            if x in self.store_r: need = max(need, self.store_r[x] + 1 + 2)
            if x in self.mfma_c: need = max(need, self.mfma_c[x] + 1 + 3)
        self._pad_to(need)
        if len(self.lgkm) >= 15:
            self._out(f"s_waitcnt lgkmcnt({self.refill})"); self.lgkm = self.lgkm[len(self.lgkm)-self.refill:]
        self._out(text)
        self.nds += 1
        for x in dst:
            self.mfma_w.pop(x, None); self.valu_w.pop(x, None)
        self.lgkm.append(set(dst))
    def ds_write(self, text, src):
        src = list(src)
        self._lgkm_for(src)
        self._pad_to(self._need_mfma_w(src, 8))
        if len(self.lgkm) >= 15:
            self._out(f"s_waitcnt lgkmcnt({self.refill})"); self.lgkm = self.lgkm[len(self.lgkm)-self.refill:]
        self._out(text)
        self.nds += 1
        self.lgkm.append(set())
    def vmem(self, text, r=(), sr=(), wide_data=(), dma=False):
        r = list(r)
        self._lgkm_for(r)
        need = self._need_mfma_w(r, 8)
        for x in sr:
            if x in self.valu_sw: need = max(need, self.valu_sw[x] + 1 + 5)
        if dma: need = max(need, self.m0_w + 1 + 1)
        self._pad_to(need)
        s = self.slot
        self._out(text)
        for x in wide_data: self.store_r[x] = s
    def raw(self, text, states=1):
        self._out(text, states)
    def barrier(self):
        self._out("s_barrier")
    def region_begin(self):
        self._rb = getattr(self, "_rb", [])
        snaps = [dict(d) for d in (self.mfma_w, self.mfma_c, self.valu_w, self.valu_sw, self.store_r)]
        self._rb.append((self.slot, list(self.lgkm), snaps, dict(self.mfma_wt)))
    def region_end(self, drain=True):
        s0, lg0, snaps, wt0 = self._rb.pop()
        if drain and self.lgkm != lg0[len(lg0)-len(self.lgkm):]:
            self.wait_lgkm0()
        shift = self.slot - s0
        for d, sn in zip((self.mfma_w, self.mfma_c, self.valu_w, self.valu_sw, self.store_r), snaps):
            for k in list(d.keys()):
                if d[k] >= s0: d[k] -= shift
            for k, v in sn.items():
                if k not in d or d[k] < v: d[k] = v
        for k, v in wt0.items():
            if self.mfma_wt.get(k) != v: self.mfma_wt[k] = ("?", -1)
        if self.m0_w >= s0: self.m0_w -= shift
        self.slot = s0
        self.lgkm = lg0
    def snapshot(self):
        return dict(slot=self.slot, lgkm=[set(x) for x in self.lgkm], m0=self.m0_w, wt=dict(self.mfma_wt),
                    d=[dict(d) for d in (self.mfma_w, self.mfma_c, self.valu_w, self.valu_sw, self.store_r)])
    def restore(self, st):
        self.slot = st["slot"]; self.lgkm = [set(x) for x in st["lgkm"]]; self.m0_w = st["m0"]; self.mfma_wt = dict(st["wt"])
        self.mfma_w, self.mfma_c, self.valu_w, self.valu_sw, self.store_r = [dict(d) for d in st["d"]]
    def merge(self, a, b):
        assert len(a["lgkm"]) == len(b["lgkm"]), (len(a["lgkm"]), len(b["lgkm"]))
        S = max(a["slot"], b["slot"])
        ds = []
        for da, db in zip(a["d"], b["d"]):
            m = {}
            for k, v in da.items(): m[k] = S - (a["slot"] - v)
            for k, v in db.items(): m[k] = max(m.get(k, -10**9), S - (b["slot"] - v))
            ds.append(m)
        wt = {}
        for k in set(a["wt"]) | set(b["wt"]):
            wt[k] = a["wt"].get(k) if a["wt"].get(k) == b["wt"].get(k) else ("?", -1)
        self.restore(dict(slot=S, lgkm=[x | y for x, y in zip(a["lgkm"], b["lgkm"])],
                          m0=max(S - (a["slot"] - a["m0"]), S - (b["slot"] - b["m0"])), wt=wt, d=ds))
    def vload(self, text, dst, r=(), sr=()):
        dst = list(dst); r = list(r)
        self._lgkm_for(dst + r)
        need = self._need_mfma_w(dst + r, 8)
        for x in sr:
            if x in self.valu_sw: need = max(need, self.valu_sw[x] + 1 + 5)
        self._pad_to(need)
        self._out(text)
        for x in dst:
            self.mfma_w.pop(x, None); self.valu_w.pop(x, None)
    def wait_for(self, regs):
        self._lgkm_for(regs)
    def text(self):
        return "\n".join(self.lines) + "\n"
```

```python
import sys, argparse
from emit import *

ap = argparse.ArgumentParser()
ap.add_argument("--stamps", action="store_true")
ap.add_argument("--name", default="standalone__detection_seg_fpn_lateral__vision_kernel")
ap.add_argument("--stflag", default="sc1")
ap.add_argument("--inflag", default="")
ap.add_argument("--nostore", action="store_true")
ap.add_argument("--pf", type=int, default=2)
ap.add_argument("--notouch", action="store_true")
ap.add_argument("--nobar", action="store_true")
ap.add_argument("--ctouch", action="store_true")
ap.add_argument("--top", type=int, default=0)
ap.add_argument("--zero", action="store_true")
ap.add_argument("--fin", type=int, default=0)
ap.add_argument("--t2", type=int, default=0)
ap.add_argument("--c64", action="store_true")
ap.add_argument("--cpos", type=int, default=0)
ap.add_argument("--lastplain", type=int, default=0)
ap.add_argument("--early", action="store_true")
args = ap.parse_args()

ROWB = 43008; CROWB = 21504
S = 224; MB = 0; MP = 16*S
PB = 17*MP + 512; PP = 2048
WB = PB + 9*PP; WS = 18432
LDS = WB + 4*WS
FINE_B = 9633792; COARSE_B = 2408448; WLAT_B = 18432; WOUT_B = 165888
INV = 0x40000000

SF, SP, SW0, SWO, SO = 20, 24, 28, 32, 36
sW, sX0, sY0, sTY, sG, sH = 40, 41, 42, 43, 45, 46
sT0, sT1, sT2, sT3 = 47, 48, 49, 50
sXO = 51
sM = 52
sWL = 54
sYG = 55
sPO = 56
sOROW = 57
sOSTEP = 58
sPOS = 59
sPL, sPLS = 14, 15
sWG = 18
sTCH = 19
sMG, sSG = 3, 2
sWGID = 101
sSTAMP = 60
vOUT2, vLANE, vM = 0, 1, 2
vROW = 3
vWE, vWO_ = 12, 15
vWL, vPL, vOUT = 18, 19, 20
vDW = 21
vT = 24
vXO, vDP = 30, 31
vFR = 32; NB = 8
vACC = 64
vLA = 148
vLa = 172
vLp = 176
WV = 184
vOR1, vOR2, vOG1, vOG2 = 180, 181, 182, 183
SS = 208; OP = 16*SS; OB = WB
XREG = [144, 216, 228, 240]

e = Emit()
V = lambda n, k=1: R('v', n, k)
nstamp = [0]
def stamp(tag, rt=False):
    if not args.stamps: return
    if args.early and tag in ("S3 end","S4 end","S5 end","S6 end","row2 done","row5 done","row8 done","end") and not rt: return
    if not args.early and tag.startswith("E:"): return
    SKIPST = ("row5 done", "row8 done", "S6 end")
    if tag in SKIPST: return
    k = nstamp[0]; nstamp[0] += 1
    assert sSTAMP + 2*k + 1 < 93
    e.raw(f"{'s_memrealtime' if rt else 's_memtime'} s[{sSTAMP+2*k}:{sSTAMP+2*k+1}]")

def wreg(j, dip, t):
    idx = (dip*3 + t)*4
    if j < 7: return ('a', 36*j + idx)
    return ('v', WV + 36*(j-7) + idx)
def wlreg(t, s): return ('v', WV + (t*3 + s)*4)
def acc(o, t): return ('v', vACC + 12*o + 4*t)
def xreg(n, s): return ('a', XREG[n] + 4*s)

lab = [0]
def newlabel(p="L"):
    lab[0] += 1; return f"{p}_{lab[0]}"
class Region:
    def __init__(self, cmp, drain=True): self.cmp = cmp; self.drain = drain
    def __enter__(self):
        self.l = newlabel("Lskip")
        e.salu(self.cmp)
        e.raw(f"s_cbranch_scc0 {self.l}")
        e.region_begin()
    def __exit__(self, *a):
        e.region_end(self.drain)
        e.label(self.l)
def if_else(cmp, fa, fb_):
    le, lj = newlabel("Lelse"), newlabel("Ljoin")
    e.salu(cmp); e.raw(f"s_cbranch_scc0 {le}")
    s0 = e.snapshot()
    fa(); e.raw(f"s_branch {lj}")
    sa = e.snapshot(); e.restore(s0)
    e.label(le); fb_()
    sb = e.snapshot(); e.label(lj); e.merge(sa, sb)
vq = []
def vm_issue(tag): vq.append(tag)
def vm_wait(*tags):
    last = max(i for i, t in enumerate(vq) if t in tags)
    e.wait_vm(len(vq) - 1 - last)
def run(ops):
    for f in ops: f()
content = {}
def setc(regs, tag):
    for r in regs: content[r] = tag
def chk(regs, tag):
    for r in regs: assert content.get(r) == tag, (r, content.get(r), tag)

hdr = open("standalone__detection_seg_fpn_lateral__vision.s.ref").read().split("\n")
out = []
for l in hdr:
    if l.startswith("; @launch"): break
    out.append(l)
out.append(f"; @launch grid=(256,1,1) block=(256,1,1) lds={LDS}")
out.append('.amdgcn_target "amdgcn-amd-amdhsa--gfx950"')
out.append(".text")
out.append(f".globl {args.name}")
out.append(".p2align 8")
out.append(f".type {args.name},@function")
out.append(f"{args.name}:")

stamp("start"); stamp("start", rt=True)
e.salu("s_cmpk_ge_u32 s2, 256")
e.raw("s_cbranch_scc1 L_end")
e.raw("s_load_dwordx8 s[4:11], s[0:1], 0")
e.raw("s_load_dwordx2 s[12:13], s[0:1], 32")
if args.t2:
    e.raw("s_getpc_b64 s[94:95]")
    e.label("L_pc0")
    e.salu(f"s_lshr_b32 s93, s2, 3")
    e.salu(f"s_mulk_i32 s93, {64*args.t2}")
    e.salu(f"s_min_u32 s93, s93, L_end-L_pc0-{616 + 64*(args.t2-1)}")
    e.salu("s_add_u32 s94, s94, s93")
    e.salu("s_addc_u32 s95, s95, 0")
    for k in range(args.t2): e.raw(f"s_load_dword s93, s[94:95], {616 + 64*k}")
if args.stamps:
    e.raw("s_load_dwordx2 s[16:17], s[0:1], 48")
    e.salu(f"s_mov_b32 s{sWGID}, s2")
e.valu("v_lshrrev_b32 v24, 6, v0", w=V(24), r=V(0))
e.valu(f"v_and_b32 v{vLANE}, 63, v0", w=V(vLANE), r=V(0))
e.valu(f"v_readfirstlane_b32 s{sW}, v24", r=V(24), sw=[sW], rfl=True)
e.salu(f"s_lshr_b32 s{sTCH}, s2, 3")
e.salu(f"s_mov_b32 s98, s{sTCH}")
e.salu(f"s_and_b32 s{sT2}, s2, 1")
e.salu(f"s_lshl_b32 s{sT2}, s{sT2}, 3")
e.salu(f"s_and_b32 s{sT3}, s{sTCH}, 7")
e.salu(f"s_add_u32 s{sTY}, s{sT2}, s{sT3}")
e.salu(f"s_and_b32 s{sT2}, s2, 6")
e.salu(f"s_lshl_b32 s{sT2}, s{sT2}, 1")
e.salu(f"s_lshr_b32 s{sT3}, s2, 6")
e.salu(f"s_add_u32 s{sT2}, s{sT2}, s{sT3}")
e.salu(f"s_mulk_i32 s{sTCH}, {41*128}")
e.salu(f"s_mul_i32 s{sX0}, s{sT2}, 14")
e.salu(f"s_mul_i32 s{sY0}, s{sTY}, 14")
e.salu(f"s_lshr_b32 s{sG}, s{sW}, 1", sr=[sW])
e.salu(f"s_and_b32 s{sH}, s{sW}, 1")
e.salu(f"s_mul_i32 s{sSG}, s{sG}, -2")
e.salu(f"s_add_u32 s{sSG}, s{sSG}, 1")
e.salu(f"s_mul_i32 s{sYG}, s{sG}, 15")
e.salu(f"s_add_u32 s{sYG}, s{sYG}, s{sY0}")
e.salu(f"s_sub_u32 s{sYG}, s{sYG}, 1")
e.salu(f"s_lshr_b32 s{sPO}, s{sY0}, 1")
e.salu(f"s_lshl_b32 s{sT1}, s{sG}, 3")
e.salu(f"s_add_u32 s{sPO}, s{sPO}, s{sT1}")
e.salu(f"s_sub_u32 s{sPO}, s{sPO}, 1")
e.salu(f"s_mulk_i32 s{sPO}, {CROWB}")
e.salu(f"s_mov_b32 s{sPOS}, s{sSG}")
e.salu(f"s_mulk_i32 s{sPOS}, {CROWB}")
e.salu(f"s_lshl_b32 s{sPLS}, s{sSG}, 11")
e.salu(f"s_lshl_b32 s{sPL}, s{sG}, 4")
e.salu(f"s_add_u32 s{sPL}, s{sPL}, s{sH}")
e.salu(f"s_add_u32 s{sPL}, s{sPL}, {PB // 1024}")
e.salu(f"s_lshl_b32 s{sPL}, s{sPL}, 10")
assert PB % 1024 == 0 and PB // 1024 <= 64
e.valu(f"v_mov_b32 v29, {INV:#x}", w=V(29))
vD0 = vFR
e.valu(f"v_lshlrev_b32 v{vD0}, 4, v{vLANE}", w=V(vD0), r=V(vLANE))
e.valu(f"v_and_b32 v25, 32, v{vLANE}", w=V(25), r=V(vLANE))
e.valu(f"v_xor_b32 v{vD0+1}, v25, v{vD0}", w=V(vD0+1), r=V(25)+V(vD0))
e.valu(f"v_xor_b32 v{vD0+2}, 32, v{vD0}", w=V(vD0+2), r=V(vD0))
e.valu(f"v_lshlrev_b32 v{vD0+4}, 7, v{vLANE}", w=V(vD0+4), r=V(vLANE))
e.salu(f"s_sub_u32 s{sT1}, s{sX0}, 1")
e.salu(f"s_movk_i32 s{sT0}, 192")
e.valu(f"v_and_b32 v24, 15, v{vLANE}", w=V(24), r=V(vLANE))
e.valu(f"v_lshrrev_b32 v25, 4, v{vLANE}", w=V(25), r=V(vLANE))
e.valu(f"v_add_u32 v27, s{sT1}, v24", w=V(27), r=V(24))
e.valu("v_cmp_gt_u32 vcc, 224, v27", r=V(27), sw=["vcc"])
e.valu(f"v_mul_u32_u24 v28, s{sT0}, v27", w=V(28), r=V(27))
e.valu("v_lshl_add_u32 v28, v25, 4, v28", w=V(28), r=V(25)+V(28))
e.valu(f"v_cndmask_b32 v{vXO}, v29, v28, vcc", w=V(vXO), r=V(29)+V(28), sr=["vcc"])
e.salu(f"s_cmp_eq_u32 s{sT2}, 0")
e.salu(f"s_cselect_b32 s{sT1}, s{sT0}, 0")
e.salu(f"s_cmp_eq_u32 s{sT2}, 15")
e.salu(f"s_cselect_b32 s{sT3}, s{sT0}, s{sT1}")
e.salu(f"s_sub_u32 s{sT3}, {9*192}, s{sT3}")
e.salu(f"s_lshl_b32 s{sM}, s{sH}, 10")
e.salu(f"s_sub_u32 s{sM}, s{sM}, s{sT1}")
e.valu(f"v_add_u32 v26, s{sM}, v{vD0}", w=V(26), r=V(vD0))
e.valu(f"v_cmp_gt_u32 vcc, s{sT3}, v26", r=V(26), sw=["vcc"])
e.salu(f"s_mulk_i32 s{sT2}, {7*192}")
e.salu(f"s_add_u32 s{sT2}, s{sT2}, s{sT1}")
e.salu(f"s_sub_u32 s{sT2}, s{sT2}, s{sT0}")
e.valu(f"v_add_u32 v26, s{sT2}, v26", w=V(26), r=V(26))
e.valu(f"v_cndmask_b32 v{vDP}, v29, v26, vcc", w=V(vDP), r=V(29)+V(26), sr=["vcc"])
e.salu(f"s_mov_b32 s{SF+3}, 0x20000")
e.salu(f"s_mov_b32 s{SF+2}, {FINE_B}")
e.salu(f"s_mov_b32 s{SP+2}, {COARSE_B}")
e.salu(f"s_movk_i32 s{SW0+2}, {WLAT_B}")
e.salu(f"s_mov_b32 s{SWO+2}, {WOUT_B}")
for srd in (SP, SW0, SWO): e.salu(f"s_mov_b32 s{srd+3}, s{SF+3}")
e.salu(f"s_mov_b32 s{sT3}, s{sW}")
e.salu(f"s_mulk_i32 s{sT3}, 6144")
stamp("E:pre-kernarg-wait")
e.raw("s_waitcnt lgkmcnt(0)")
stamp("E:kernarg")
for srd, p in ((SW0, 8), (SWO, 10), (SF, 4), (SP, 6)):
    e.salu(f"s_mov_b64 s[{srd}:{srd+1}], s[{p}:{p+1}]")

GSLOT = {0: 2, 1: 0, 2: 2, 3: 0, 4: 3}
def slot_of(j): return 0 if j < 0 else GSLOT[j // 2] + (j % 2)
def group_ops(G):
    ops = []
    cnt = G < 4
    for blk in range(3):
        def f(blk=blk):
            e.salu(f"s_add_u32 m0, s{sWL}, {GSLOT[G]*WS + blk*6144}", m0=True)
            e.salu(f"s_add_u32 s{sT2}, s{sWG}, {2*G*6144 + blk*55296}")
            e.vmem(f"buffer_load_dwordx4 v{vDW}, s[{SWO}:{SWO+3}], s{sT2} offen lds", r=V(vDW), dma=True)
            if cnt: vm_issue(f"G{G}")
        ops.append(f)
        for p in (1, 2):
            def f(p=p):
                e.vmem(f"buffer_load_dwordx4 v{vDW+p}, s[{SWO}:{SWO+3}], s{sT2} offen offset:{1024*p} lds", r=V(vDW+p), dma=True)
                if cnt: vm_issue(f"G{G}")
            ops.append(f)
    return ops
def p_ops(crp, tag):
    def f():
        if crp == 0:
            e.salu(f"s_mov_b32 m0, s{sPL}", m0=True)
            e.salu(f"s_mul_i32 s{sT1}, s{sG}, 15")
            e.salu(f"s_cmp_eq_u32 s{sTY}, s{sT1}")
            e.salu(f"s_cselect_b32 s{SP+2}, 0, {COARSE_B}")
            e.salu(f"s_cselect_b32 s{sT0}, 0, s{sPO}")
        else:
            e.salu(f"s_mul_i32 s{sT1}, s{sPLS}, {crp}")
            e.salu(f"s_add_u32 m0, s{sPL}, s{sT1}", m0=True)
            e.salu(f"s_mul_i32 s{sT0}, s{sPOS}, {crp}")
            e.salu(f"s_add_u32 s{sT0}, s{sT0}, s{sPO}")
        e.vmem(f"buffer_load_dwordx4 v{vDP}, s[{SP}:{SP+3}], s{sT0} offen {args.inflag} lds", r=V(vDP), dma=True)
        vm_issue(tag)
        if crp == 0: e.salu(f"s_mov_b32 s{SP+2}, {COARSE_B}")
    return [f]
RB = [3, 5, 1, 7]; RH = [1, 1, 1, -7]
def x_ops(n):
    ops = []
    for s in range(3):
        def f(s=s):
            if s == 0:
                if RH[n] == 1: e.salu(f"s_add_u32 s{sXO}, s{sH}, {RB[n]}")
                else:
                    e.salu(f"s_mul_i32 s{sXO}, s{sH}, {RH[n]}")
                    e.salu(f"s_add_u32 s{sXO}, s{sXO}, {RB[n]}")
                e.salu(f"s_mul_i32 s{sXO}, s{sXO}, s{sSG}")
                e.salu(f"s_add_u32 s{sXO}, s{sXO}, s{sYG}")
                if n == 3:
                    e.salu(f"s_cmp_ge_u32 s{sXO}, 224")
                    e.salu(f"s_cselect_b32 s{SF+2}, 0, {FINE_B}")
                    e.salu(f"s_cselect_b32 s{sXO}, 0, s{sXO}")
                e.salu(f"s_mul_i32 s{sXO}, s{sXO}, {ROWB}")
            k, r0 = xreg(n, s)
            e.vload(f"buffer_load_dwordx4 {rs(k, r0, 4)}, v{vXO}, s[{SF}:{SF+3}], s{sXO} offen offset:{64*s} {args.inflag}", R(k, r0, 4), r=V(vXO))
            vm_issue(f"X{n}"); setc(R(k, r0, 4), ("x", n))
        ops.append(f)
    return ops

pass
def code_touch():
    if not args.ctouch: return
    e.raw("s_getpc_b64 s[96:97]")
    e.label("L_pc")
    e.salu(f"s_mulk_i32 s98, 384")
    e.salu("s_min_u32 s98, s98, L_end-L_pc-320")
    e.salu("s_add_u32 s96, s96, s98")
    e.salu("s_addc_u32 s97, s97, 0")
    for k in range(6): e.raw(f"s_load_dword s99, s[96:97], {64*k}")
def w1_a():
    for half in range(2):
        e.salu(f"s_add_u32 m0, s{sT3}, {WB + half*3072}", m0=True)
        if half: e.salu(f"s_addk_i32 s{sT3}, 3072")
        for p in range(3):
            e.vmem(f"buffer_load_dwordx4 v{vD0+p}, s[{SW0}:{SW0+3}], s{sT3} offen offset:{1024*p} lds", r=V(vD0+p), dma=True)
def w1_b():
    if not args.notouch:
        e.salu("s_mov_b32 exec_hi, 0x1ff")
        e.vload(f"buffer_load_dword v{vD0+5}, v{vD0+4}, s[{SWO}:{SWO+3}], s{sTCH} offen", V(vD0+5), r=V(vD0+4))
        e.salu("s_mov_b32 exec_hi, -1")
if_else(f"s_cmp_lt_u32 s{sW}, 3", w1_a, w1_b)
vm_issue("WL")
run(p_ops(2, "PA") + x_ops(0) + p_ops(3, "PB"))
stamp("E:W1 issued")
if args.cpos == 0: code_touch()

e.salu(f"s_mul_i32 s{sT3}, s{sH}, 3072")
for p in range(3):
    e.valu(f"v_add_u32 v{vDW+p}, s{sT3}, v{vD0+p}", w=V(vDW+p), r=V(vD0+p))
e.salu(f"s_mul_i32 s{sWG}, s{sG}, 6144")
e.salu(f"s_mul_i32 s{sWL}, s{sG}, {WS}")
e.salu(f"s_add_u32 s{sWL}, s{sWL}, s{sT3}")
e.salu(f"s_add_u32 s{sWL}, s{sWL}, {WB}")
g0 = group_ops(0)
run(g0[:3])
e.valu("v_lshrrev_b32 v26, 2, v24", w=V(26), r=V(24))
e.valu("v_lshl_add_u32 v26, v25, 3, v26", w=V(26), r=V(25)+V(26))
e.valu("v_mul_u32_u24 v26, 192, v26", w=V(26), r=V(26))
e.valu(f"v_and_b32 v27, 3, v{vLANE}", w=V(27), r=V(vLANE))
e.valu("v_and_b32 v28, 1, v25", w=V(28), r=V(25))
e.valu("v_lshlrev_b32 v28, 5, v28", w=V(28), r=V(28))
e.valu(f"v_lshlrev_b32 v{vWL}, 4, v27", w=V(vWL), r=V(27))
e.valu(f"v_xor_b32 v{vWL}, v{vWL}, v28", w=V(vWL), r=V(vWL)+V(28))
e.valu(f"v_add_u32 v{vWL}, v{vWL}, v26", w=V(vWL), r=V(vWL)+V(26))
e.valu(f"v_add_u32 v{vWL}, {WB}, v{vWL}", w=V(vWL), r=V(vWL))
e.valu("v_lshl_add_u32 v26, v27, 3, v26", w=V(26), r=V(27)+V(26))
e.salu(f"s_mul_i32 s{sT0}, s{sH}, 96")
e.salu(f"s_add_u32 s{sT0}, s{sT0}, {WB}")
e.valu(f"v_add_u32 v26, s{sT0}, v26", w=V(26), r=V(26))
e.salu(f"s_mul_i32 s{sT0}, s{sH}, -2")
e.salu(f"s_add_u32 s{sT0}, s{sT0}, 1")
e.valu(f"v_mul_i32_i24 v28, s{sT0}, v28", w=V(28), r=V(28))
e.valu("v_add_u32 v27, v26, v28", w=V(27), r=V(26)+V(28))
e.valu("v_sub_u32 v26, v26, v28", w=V(26), r=V(26)+V(28))
e.salu(f"s_mul_i32 s{sT0}, s{sG}, 12288")
e.salu(f"s_sub_u32 s{sT1}, 12288, s{sT0}")
e.valu(f"v_add_u32 v{vWE}, s{sT0}, v27", w=V(vWE), r=V(27))
e.valu(f"v_add_u32 v{vWE+1}, 6144, v27", w=V(vWE+1), r=V(27))
e.valu(f"v_add_u32 v{vWE+2}, s{sT1}, v27", w=V(vWE+2), r=V(27))
e.valu(f"v_add_u32 v{vWO_}, s{sT0}, v26", w=V(vWO_), r=V(26))
e.valu(f"v_add_u32 v{vWO_+1}, 6144, v26", w=V(vWO_+1), r=V(26))
e.valu(f"v_add_u32 v{vWO_+2}, s{sT1}, v26", w=V(vWO_+2), r=V(26))
e.valu(f"v_mul_u32_u24 v{vM}, {S}, v24", w=V(vM), r=V(24))
e.valu(f"v_lshl_add_u32 v{vM}, v25, 4, v{vM}", w=V(vM), r=V(25)+V(vM))
e.salu(f"s_mul_i32 s{sMG}, s{sG}, {15*MP}")
e.salu(f"s_mul_i32 s{sT1}, s{sSG}, {MP}")
e.valu(f"v_add_u32 v{vROW}, s{sMG}, v{vM}", w=V(vROW), r=V(vM))
for k in range(1, 9):
    e.valu(f"v_add_u32 v{vROW+k}, s{sT1}, v{vROW+k-1}", w=V(vROW+k), r=V(vROW+k-1))
e.salu(f"s_cmp_eq_u32 s{sH}, 1")
e.salu(f"s_cselect_b64 s[{sM}:{sM+1}], -1, 0")
for n in range(4):
    e.valu(f"v_cndmask_b32 v{vLa+n}, v{vROW+RB[n]}, v{vROW+RB[n]+RH[n]}, s[{sM}:{sM+1}]", w=V(vLa+n), r=V(vROW+RB[n])+V(vROW+RB[n]+RH[n]))
if args.zero:
    e.valu("v_cmp_lt_u32 vcc, 13, v24", r=V(24), sw=["vcc"])
    e.valu(f"v_add_u32 v26, {16*MP}, v{vM}", w=V(26), r=V(vM))
    for k in range(4): e.valu(f"v_mov_b32 v{vFR+8+k}, 0", w=V(vFR+8+k))
    for k in range(9):
        e.valu(f"v_cndmask_b32 v{vROW+k}, v{vROW+k}, v26, vcc", w=V(vROW+k), r=V(vROW+k)+V(26), sr=["vcc"])
    e.ds_write(f"ds_write_b128 v{vD0}, v[{vFR+8}:{vFR+11}] offset:{16*MP + 14*S}", V(vD0) + V(vFR+8, 4))
e.valu("v_add_u32 v26, 1, v24", w=V(26), r=V(24))
e.valu("v_lshrrev_b32 v26, 1, v26", w=V(26), r=V(26))
e.valu("v_mul_u32_u24 v26, 192, v26", w=V(26), r=V(26))
e.valu(f"v_lshl_add_u32 v26, v25, 4, v26", w=V(26), r=V(25)+V(26))
e.salu(f"s_lshl_b32 s{sT0}, s{sG}, 14")
e.salu(f"s_add_u32 s{sT0}, s{sT0}, {PB}")
e.valu(f"v_add_u32 v{vPL}, s{sT0}, v26", w=V(vPL), r=V(26))
for n, crp in enumerate((2, 3, 1)):
    e.salu(f"s_mul_i32 s{sT0}, s{sPLS}, {crp}")
    e.valu(f"v_add_u32 v{vLp+n}, s{sT0}, v{vPL}", w=V(vLp+n), r=V(vPL))
e.salu(f"s_mul_i32 s{sT0}, s{sPLS}, 4")
e.salu(f"s_cmp_eq_u32 s{sH}, 1")
e.salu(f"s_cselect_b32 s{sT0}, 0, s{sT0}")
e.valu(f"v_add_u32 v{vLp+3}, s{sT0}, v{vPL}", w=V(vLp+3), r=V(vPL))
e.valu(f"v_mul_u32_u24 v26, {SS}, v24", w=V(26), r=V(24))
e.salu(f"s_mul_i32 s{sT0}, s{sH}, 96")
e.salu(f"s_mul_i32 s{sT1}, s{sG}, {7*OP}")
e.salu(f"s_add_u32 s{sT1}, s{sT1}, {OB}")
e.salu(f"s_add_u32 s{sT0}, s{sT0}, s{sT1}")
e.valu(f"v_add_u32 v26, s{sT0}, v26", w=V(26), r=V(26))
e.valu("v_and_b32 v27, 1, v25", w=V(27), r=V(25))
e.valu("v_lshrrev_b32 v28, 1, v25", w=V(28), r=V(25))
e.valu(f"v_lshl_add_u32 v{vOUT}, v25, 3, v26", w=V(vOUT), r=V(25)+V(26))
e.valu("v_lshl_add_u32 v26, v27, 5, v26", w=V(26), r=V(27)+V(26))
e.valu(f"v_lshl_add_u32 v{vOUT2}, v28, 4, v26", w=V(vOUT2), r=V(28)+V(26))
e.salu(f"s_lshl_b32 s{sT0}, s{sH}, 6")
e.salu(f"s_mul_i32 s{sT2}, s{sH}, 24")
e.salu(f"s_add_u32 s{sT2}, s{sT2}, 128")
e.salu(f"s_mul_i32 s{sT3}, s{sX0}, 192")
for (sn, vr, vg) in ((sT0, vOR1, vOG1), (sT2, vOR2, vOG2)):
    e.valu(f"v_add_u32 v26, s{sn}, v{vLANE}", w=V(26), r=V(vLANE))
    e.valu("v_mul_u32_u24 v27, 5462, v26", w=V(27), r=V(26))
    e.valu("v_lshrrev_b32 v27, 16, v27", w=V(27), r=V(27))
    e.valu("v_lshlrev_b32 v26, 4, v26", w=V(26), r=V(26))
    e.valu(f"v_lshl_add_u32 v27, v27, 4, v26", w=V(27), r=V(27)+V(26))
    e.valu(f"v_add_u32 v{vr}, s{sT1}, v27", w=V(vr), r=V(27))
    e.valu(f"v_add_u32 v{vg}, s{sT3}, v26", w=V(vg), r=V(26))
e.salu(f"s_lshl_b32 s{sT0}, s{sH}, 3")
e.salu(f"s_sub_u32 s{sT0}, 24, s{sT0}")
e.valu(f"v_cmp_gt_u32 vcc, s{sT0}, v{vLANE}", r=V(vLANE), sw=["vcc"])
e.valu(f"v_cndmask_b32 v{vOG2}, v29, v{vOG2}, vcc", w=V(vOG2), r=V(29)+V(vOG2), sr=["vcc"])
e.valu(f"v_cndmask_b32 v{vOR2}, v{vOR1}, v{vOR2}, vcc", w=V(vOR2), r=V(vOR1)+V(vOR2), sr=["vcc"])
e.salu(f"s_mul_i32 s{sT0}, s{sG}, 13")
e.salu(f"s_add_u32 s{sT0}, s{sT0}, s{sY0}")
e.salu(f"s_mul_i32 s{sOROW}, s{sT0}, {ROWB}")
e.salu(f"s_mul_i32 s{sOSTEP}, s{sSG}, {ROWB}")

def pull_ops(j, order=(2, 1, 0)):
    slot = slot_of(j)
    ops = []
    if j < 0:
        for s in range(3):
            for t in range(6):
                for hh in range(2):
                    k, b = wlreg(t, s)
                    off = slot*WS + s*6144 + hh*768 + 64*(t >> 1) + 8*(t & 1)
                    def f(k=k, b=b, off=off, hh=hh):
                        e.ds_read(f"ds_read_b64_tr_b16 {rs(k, b+2*hh, 2)}, v{vWL} offset:{off}", R(k, b+2*hh, 2), V(vWL))
                        setc(R(k, b+2*hh, 2), "wl")
                    ops.append(f)
    else:
        for dip in order:
            for t in range(3):
                for hh in range(2):
                    k, b = wreg(j, dip, t)
                    va = (vWE if t % 2 == 0 else vWO_) + dip
                    off = slot*WS + hh*768 + 32*t
                    def f(k=k, b=b, off=off, hh=hh, va=va):
                        e.ds_read(f"ds_read_b64_tr_b16 {rs(k, b+2*hh, 2)}, v{va} offset:{off}", R(k, b+2*hh, 2), V(va))
                        setc(R(k, b+2*hh, 2), ("w", j))
                    f.ds = True
                    ops.append(f)
    return ops
def pull_last(j): return R(*wreg(j, 0, 2), 4)

def mix(a, b):
    if not a: return list(b)
    if not b: return list(a)
    res = []; bi = 0
    for n, x in enumerate(a):
        res.append(x)
        tgt = ((n + 1) * len(b)) // len(a)
        while bi < tgt: res.append(b[bi]); bi += 1
    return res + list(b[bi:])
NOP = lambda: None
def pad(ops, n): return list(ops) + [NOP] * max(0, n - len(ops))
def seg(main, fill):
    nm, nf = len(main), len(fill)
    fi = 0
    for n, m in enumerate(main):
        m()
        tgt = -(-(n + 1) * nf // nm) if nm else nf
        while fi < min(tgt, nf): fill[fi](); fi += 1
    while fi < nf: fill[fi](); fi += 1

vLB = 124
LSET = [vLA, vLA, vLA, vLA]
def lat_reads(n):
    A = LSET[n]
    ops = []
    for u in range(3):
        def f(u=u):
            e.ds_read(f"ds_read_b128 v[{A+8*u+4}:{A+8*u+7}], v{vLp+n} offset:{64*u}", V(A+8*u+4, 4), V(vLp+n))
            setc(V(A+8*u+4, 4), ("p", n))
        f.ds = True
        ops.append(f)
    return ops
def lat_unpack(n):
    A = LSET[n]
    ops = []
    for u in range(3):
        a = A + 8*u
        sq = [(a+0, a+4, 0), (a+1, a+4, 1), (a+2, a+5, 0), (a+3, a+5, 1),
              (a+4, a+6, 0), (a+5, a+6, 1), (a+6, a+7, 0), (a+7, a+7, 1)]
        for (d, s_, hi) in sq:
            def f(d=d, s_=s_, hi=hi):
                assert content[('v', s_)][0] == "p"
                tg = ("pu", content[('v', s_)][1])
                content[('v', d)] = tg
                if hi: e.valu(f"v_and_b32 v{d}, 0xffff0000, v{s_}", w=V(d), r=V(s_))
                else:  e.valu(f"v_lshlrev_b32 v{d}, 16, v{s_}", w=V(d), r=V(s_))
            ops.append(f)
    return ops
def lat_mfma(n, umajor=False):
    A = LSET[n]
    ops = []
    order = [(s, t) for u in range(3) for s in range(3) for t in (2*u, 2*u+1)] if umajor else [(s, t) for s in range(3) for t in range(6)]
    for (s, t) in order:
        def f(s=s, t=t):
            chk(R(*wlreg(t, s), 4), "wl"); chk(R(*xreg(n, s), 4), ("x", n)); chk(V(A+4*t, 4), ("pu", n))
            e.mfma(('v', A+4*t), wlreg(t, s), xreg(n, s), ('v', A+4*t))
        ops.append(f)
    return ops
def lat_store(n):
    A = LSET[n]
    ops = []
    for u in range(3):
        for d in range(4):
            def f(u=u, d=d):
                e.valu(f"v_cvt_pk_bf16_f32 v{A+8*u+d}, v{A+8*u+2*d}, v{A+8*u+2*d+1}", w=V(A+8*u+d), r=V(A+8*u+2*d, 2))
            ops.append(f)
        def f(u=u): e.ds_write(f"ds_write_b128 v{vLa+n}, v[{A+8*u}:{A+8*u+3}] offset:{64*u}", V(vLa+n) + V(A+8*u, 4))
        ops.append(f)
    return ops

inited = set(); done = set()
def conv_mfma(j, rp, dip, t, fr):
    o = rp - dip
    def f():
        first = (o, t) not in inited
        inited.add((o, t))
        chk(R(*wreg(j, dip, t), 4), ("w", j)); chk(V(fr, 4), ("f", rp, j))
        done.add((rp, j, dip, t))
        e.mfma(acc(o, t), wreg(j, dip, t), ('v', fr), None if first else acc(o, t))
    return f
def frag_read(j, rp, fr):
    dj, s = divmod(j, 3)
    def f():
        e.ds_read(f"ds_read_b128 v[{fr}:{fr+3}], v{vROW+rp} offset:{dj*S + 64*s}", V(fr, 4), V(vROW+rp))
        setc(V(fr, 4), ("f", rp, j))
    return f
def epilogue_ops(o):
    ops = []
    a = vACC + 12*o
    cv = [(a+0, a+0), (a+1, a+2), (a+2, a+4), (a+3, a+6), (a+8, a+8), (a+9, a+10)]
    for (d, s_) in cv:
        def f(d=d, s_=s_):
            assert all((o+dp, j, dp, t) in done for dp in range(3) for j in range(9) for t in range(3)), o
            e.valu(f"v_cvt_pk_bf16_f32 v{d}, v{s_}, v{s_+1}", w=V(d), r=V(s_, 2))
        ops.append(f)
    for d in range(2):
        def f(d=d):
            e.valu(f"v_permlane16_swap_b32 v{a+d}, v{a+2+d}", w=V(a+d)+V(a+2+d), r=V(a+d)+V(a+2+d), perm=True)
        ops.append(f)
    ops.append(lambda: e.ds_write(f"ds_write_b64 v{vOUT}, v[{a+8}:{a+9}] offset:{o*OP + 64}", V(a+8, 2) + V(vOUT)))
    ops.append(lambda: e.ds_write(f"ds_write_b128 v{vOUT2}, v[{a}:{a+3}] offset:{o*OP}", V(a, 4) + V(vOUT2)))
    return ops
def stf(o): return "" if o >= 7-args.lastplain else args.stflag
def store_ops(o):
    a = vACC + 12*o
    ops = []
    ops.append(lambda: e.ds_read(f"ds_read_b128 v[{a}:{a+3}], v{vOR1} offset:{o*OP}", V(a, 4), V(vOR1)))
    ops.append(lambda: e.ds_read(f"ds_read_b128 v[{a+4}:{a+7}], v{vOR2} offset:{o*OP}", V(a+4, 4), V(vOR2)))
    def so():
        e.salu(f"s_mul_i32 s{sT3}, s{sOSTEP}, {o}")
        e.salu(f"s_add_u32 s{sT3}, s{sT3}, s{sOROW}")
    ops += [so, NOP, NOP, NOP, NOP]
    if not args.nostore:
        ops.append(lambda: e.vmem(f"buffer_store_dwordx4 v[{a}:{a+3}], v{vOG1}, s[{SO}:{SO+3}], s{sT3} offen {stf(o)}",
                                  r=V(a, 4) + V(vOG1), wide_data=V(a, 4)))
        ops.append(NOP)
        ops.append(lambda: e.vmem(f"buffer_store_dwordx4 v[{a+4}:{a+7}], v{vOG2}, s[{SO}:{SO+3}], s{sT3} offen {stf(o)}",
                                  r=V(a+4, 4) + V(vOG2), wide_data=V(a+4, 4)))
    return ops
wq = []
def wait_writes():
    last = -1
    for i, d in enumerate(e.lgkm):
        if not d: last = i
    if last >= 0:
        n = len(e.lgkm) - 1 - last
        e.raw(f"s_waitcnt lgkmcnt({n})"); e.lgkm = e.lgkm[last+1:]

def dips_of(rp): return [d for d in (2, 1, 0) if 0 <= rp - d <= 6]
vis_row = {3: 2, 4: 2, 5: 3, 6: 3, 1: 4, 2: 4, 0: 5, 7: 5, 8: 5}
items = []
groups = {}
def add(name, rps, js, rowmajor=False):
    g = groups.setdefault(name, [])
    lst = [(rp, j) for rp in rps for j in js] if rowmajor else [(rp, j) for j in js for rp in rps]
    for rp, j in lst:
        g.append(len(items)); items.append((rp, j))
RA_, RB_, RC_, RD_ = (3, 4), (5, 6), (2, 1), (7, 8, 0)
add("2a", RA_, (0,)); add("2b", (3,), (1,)); add("2c", (4,), (1,))
add("3a", RB_, (0,)); add("3b", RB_, (1,)); add("3c", RA_, (2,))
add("4a", RB_, (2,)); add("4b", RA_, (3,))
add("5a", RB_, (3,)); add("5b", RC_, (0,))
add("6a", RC_, (1,)); add("6b", RC_, (2, 3)); add("6b", RD_, (0,)); add("6c", RD_, (1, 2, 3))
add("7a", (0, 1), (4, 5, 6)); add("7b", (0, 1), (7,))
add("8_2a", (2,), (4, 5)); add("8_2b", (2,), (6, 7)); add("8_2c", (0, 1, 2), (8,))
for r in range(3, 9): add(f"8_{r}", (r,), (4, 5, 6, 7, 8))
assert sorted(items) == sorted((r, j) for r in range(9) for j in range(9))
fr_done = set()
PF = args.pf
def fb(n): return vFR + 4*(n % NB)
def item_main(n):
    rp, j = items[n]
    return [conv_mfma(j, rp, dip, t, fb(n)) for dip in dips_of(rp) for t in range(3)]
def prefetch_ops(n, step, depth=None):
    ops = []
    ahead = 0
    lim = 9*(PF if depth is None else depth)
    for m in range(n, min(n + NB - 1, len(items))):
        rp, j = items[m]
        if m > n and ahead >= lim + 1: break
        if m not in fr_done:
            if vis_row[rp] > step: break
            fr_done.add(m); ops.append(frag_read(j, rp, fb(m)))
        ahead += 3*len(dips_of(rp))
    return ops
def conv_seg(names, step, fill, depth=None):
    idx = [n for nm_ in names for n in groups[nm_]]
    main = []; mk = {}
    for n in idx:
        assert vis_row[items[n][0]] <= step
        mk[len(main)] = n; main += item_main(n)
    nm, nf = len(main), len(fill)
    fi = 0
    pq = []
    for p, m in enumerate(main):
        if p in mk:
            n = mk[p]
            while pq and pq[0][0] <= n: pq.pop(0)[1]()
            if n not in fr_done: run(prefetch_ops(n, step, 0)[:1])
            before = set(fr_done)
            ops = prefetch_ops(n, step, depth)
            new = sorted(set(fr_done) - before)
            pq += list(zip(new, ops))
        m()
        nds0 = e.nds
        if pq: pq.pop(0)[1]()
        tgt = -(-(p + 1) * nf // nm)
        cnt = 0
        while fi < min(tgt, nf):
            f = fill[fi]
            if getattr(f, "ds", False) and e.nds > nds0 and (nf - fi) < (nm - p): break
            f(); fi += 1; cnt += 1
            if cnt >= 3: break
    while pq: pq.pop(0)[1]()
    while fi < nf: fill[fi](); fi += 1

e.salu(f"s_mov_b64 s[{SO}:{SO+1}], s[12:13]")
e.salu(f"s_mov_b32 s{SO+2}, {FINE_B}")
e.salu(f"s_mov_b32 s{SO+3}, 0x20000")
if args.cpos == 1: code_touch()
stamp("E:setup done"); vm_wait("WL"); stamp("B0 wait done"); e.barrier()
run(mix(pull_ops(-1), g0[3:]))
pass
vm_wait("PA"); e.wait_lgkm0(); pass; e.barrier()
run(lat_reads(0))
run(x_ops(1))
run(lat_unpack(0))
g1 = group_ops(1)
def lateral_first(n, fill_a, fill_b, stores=True):
    lm = lat_mfma(n); ls = lat_store(n)
    idx = [i for i, t in enumerate(vq) if t == f"X{n}"]
    for s_ in range(3):
        e.wait_vm(len(vq) - 1 - idx[s_])
        if s_ == 0: stamp(f"X{n} landed")
        if s_ < 2: seg(lm[6*s_:6*s_+6], (fill_a, fill_b)[s_])
    run(lm[12:])
    if stores: run(ls)
lateral_first(0, [], [], stores=False)
run(g1[:3])
run(lat_store(0))
vm_wait("G0"); e.wait_lgkm0(); stamp("S1 end"); e.barrier()
p0 = pull_ops(0); p1 = pull_ops(1); u1 = lat_unpack(1)
run(prefetch_ops(groups["2a"][0], 2, 1)); run(p0[:6])
m2 = [conv_mfma(0, items[n][0], d, t, fb(n)) for d in (2, 1, 0) for n in groups["2a"] for t in range(3)]
seg(m2[:6], p0[6:])
seg(m2[6:], mix(lat_reads(1) + prefetch_ops(groups["2b"][0], 2, 1) + p1[:12], g1[3:6]))
seg(item_main(groups["2b"][0])[:6], mix(p1[12:], g1[6:]) + u1[:4])
conv_seg_rest = item_main(groups["2b"][0])[6:]
seg(conv_seg_rest, u1[4:12])
run(u1[12:] + p_ops(1, "PC") + x_ops(2))
lateral_first(1, [], [], stores=False)
conv_seg(["2c"], 2, lat_store(1))
vm_wait("G1"); e.wait_lgkm0(); stamp("S2 end"); e.barrier()
e.refill = 7
g2 = group_ops(2); g3 = group_ops(3)
run(prefetch_ops(groups["3a"][0], 3, 1))
conv_seg(["3a", "3b"], 3, mix(pull_ops(2) + pull_ops(3)[:8], p_ops(4, "PD") + p_ops(0, "PD") + x_ops(3)))
conv_seg(["3c"], 3, pull_ops(3)[8:] + [NOP]*4)
vm_wait("X2"); e.wait_for(pull_last(3)); stamp("S3 end"); e.barrier()
conv_seg(["4a"], 3, lat_reads(2) + lat_unpack(2))
seg(lat_mfma(2), g2[:3])
conv_seg(["4b"], 3, lat_store(2) + g2[3:6])
vm_wait("X3"); e.wait_lgkm0(); stamp("S4 end"); e.barrier()
conv_seg(["5a"], 4, lat_reads(3) + mix(lat_unpack(3), g2[6:]))
seg(lat_mfma(3), g3[:4])
conv_seg(["5b"], 4, lat_store(3) + g3[4:6])
conv_seg(["6a"], 4, g3[6:])
vm_wait("G2"); e.wait_lgkm0(); stamp("S5 end"); e.barrier()
def g4blk(k):
    def f():
        with Region(f"s_cmp_eq_u32 s{sG}, 0"): run(group_ops(4)[3*k:3*k+3])
    return f
p4 = pull_ops(4, order=(0, 1, 2))
conv_seg(["6b"], 5, pull_ops(5) + p4[:12])
vm_wait("G3"); e.wait_for(pull_last(5)); stamp("S6 end"); e.barrier()
def g4one(k):
    def f():
        with Region(f"s_cmp_eq_u32 s{sG}, 0"): group_ops(4)[k]()
    return f
conv_seg(["6c"], 5, mix(p4[12:] + pull_ops(6), [g4blk(0), g4blk(1), g4blk(2), NOP]))
conv_seg(["7a"], 5, pull_ops(7) + [NOP]*3)
conv_seg(["7b"], 5, [])
e.wait_vm(0); e.wait_for(pull_last(7)); stamp("S7 end"); e.barrier()
conv_seg(["8_2a", "8_2b"], 5, pull_ops(8) + [NOP]*10)
conv_seg(["8_2c"], 5, [])
stamp("row2 done")
def halves(r):
    g = groups[f"8_{r}"]; h = (len(g) + 1)//2
    groups[f"8_{r}x"] = g[:h]; groups[f"8_{r}y"] = g[h:]
for r in range(3, 9): halves(r)
if args.fin == 0:
    for r in range(3, 9):
        o = r - 3
        conv_seg([f"8_{r}x"], 5, epilogue_ops(o) + [NOP]*6)
        wait_writes(); e.barrier()
        conv_seg([f"8_{r}y"], 5, store_ops(o))
    run(epilogue_ops(6))
else:
    conv_seg(["8_3"], 5, epilogue_ops(0))
    conv_seg(["8_4x"], 5, epilogue_ops(1) + [NOP]*6)
    wait_writes(); e.barrier()
    conv_seg(["8_4y"], 5, store_ops(0))
    conv_seg(["8_5x"], 5, store_ops(1))
    conv_seg(["8_5y"], 5, epilogue_ops(2))
    conv_seg(["8_6x"], 5, epilogue_ops(3) + [NOP]*6)
    wait_writes(); e.barrier()
    conv_seg(["8_6y"], 5, store_ops(2))
    conv_seg(["8_7x"], 5, epilogue_ops(4) + store_ops(3))
    conv_seg(["8_7y"], 5, [])
    g8 = groups["8_8"]
    run(prefetch_ops(g8[0], 5, 9))
    m8 = [conv_mfma(items[n][1], 8, 2, t, fb(n)) for t in range(3) for n in g8]
    ep5 = epilogue_ops(5)
    seg(m8[:8], ep5)
    wait_writes(); e.barrier()
    s4 = [f for f in store_ops(4) if f is not NOP]; s5 = [f for f in store_ops(5) if f is not NOP]
    seg(m8[8:], s4[:2] + s5[:2] + s4[2:])
    EP6_PARTIAL = True
    run(epilogue_ops(6))
    run(s5[2:])
wait_writes(); e.barrier()
run([f for f in store_ops(6) if f is not NOP])
stamp("end")
if args.stamps:
    e.raw("s_waitcnt vmcnt(0)")
    stamp("stores done"); stamp("end", rt=True)
    e.raw("s_waitcnt lgkmcnt(0)")
    e.salu(f"s_lshl_b32 s{sT0}, s{sWGID}, 2")
    e.salu(f"s_add_u32 s{sT0}, s{sT0}, s{sW}")
    e.salu(f"s_lshl_b32 s{sT0}, s{sT0}, 8")
    e.salu("s_mov_b32 s20, s16"); e.salu("s_mov_b32 s21, s17"); e.salu("s_mov_b32 s22, 0x100000"); e.salu("s_mov_b32 s23, 0x20000")
    e.valu("v_mov_b32 v24, 0", w=V(24))
    e.raw("s_mov_b64 exec, 1")
    for k in range(nstamp[0]):
        e.valu(f"v_mov_b32 v26, s{sSTAMP+2*k}", w=V(26))
        e.valu(f"v_mov_b32 v27, s{sSTAMP+2*k+1}", w=V(27))
        e.vmem(f"buffer_store_dwordx2 v[26:27], v24, s[20:23], s{sT0} offen offset:{8*k}", r=V(24)+V(26, 2))
        e.raw("s_nop 1")
e.label("L_end")
e.raw("s_endpgm")

out.append(e.text())
out.append('.section .rodata,"a"')
out.append(".p2align 6")
out.append(f".amdhsa_kernel {args.name}")
out.append("  .amdhsa_next_free_vgpr 512")
out.append("  .amdhsa_next_free_sgpr 102")
out.append("  .amdhsa_accum_offset 256")
out.append("  .amdhsa_group_segment_fixed_size 0")
out.append("  .amdhsa_kernarg_size 56")
out.append("  .amdhsa_user_sgpr_count 2")
out.append("  .amdhsa_user_sgpr_kernarg_segment_ptr 1")
out.append("  .amdhsa_system_sgpr_workgroup_id_x 1")
out.append(".end_amdhsa_kernel")
print("\n".join(out))
nm = sum(1 for l in e.lines if "v_mfma" in l)
sys.stderr.write(f"nops={e.nops} waits={e.waits} stamps={nstamp[0]} lines={len(e.lines)} mfma={nm} vq={len(vq)} lds={LDS}\n")
```

```python
import sys, argparse
from emit import *

ap = argparse.ArgumentParser()
ap.add_argument("--stamps", action="store_true")
ap.add_argument("--name", default="standalone__detection_seg_fpn_lateral__vision_kernel")
ap.add_argument("--stflag", default="sc1")
ap.add_argument("--inflag", default="")
ap.add_argument("--nostore", action="store_true")
ap.add_argument("--pf", type=int, default=2)
ap.add_argument("--notouch", action="store_true")
ap.add_argument("--nobar", action="store_true")
ap.add_argument("--ctouch", action="store_true")
ap.add_argument("--top", type=int, default=0)
ap.add_argument("--zero", action="store_true")
ap.add_argument("--fin", type=int, default=0)
ap.add_argument("--t2", type=int, default=0)
ap.add_argument("--c64", action="store_true")
ap.add_argument("--cpos", type=int, default=0)
ap.add_argument("--chain", type=int, default=4)
ap.add_argument("--tw", type=int, default=0)
ap.add_argument("--map", type=int, default=1)
ap.add_argument("--tlate", action="store_true")
ap.add_argument("--mid", action="store_true")
ap.add_argument("--st2", action="store_true")
ap.add_argument("--lo", type=int, default=0)
ap.add_argument("--clk", action="store_true")
ap.add_argument("--lastplain", type=int, default=0)
ap.add_argument("--early", action="store_true")
args = ap.parse_args()

ROWB = 43008; CROWB = 21504
S = 224; MB = 0; MP = 16*S
PB = 17*MP + 512; PP = 2048
WB = PB + 9*PP; WS = 18432
LDS = WB + 4*WS
FINE_B = 9633792; COARSE_B = 2408448; WLAT_B = 18432; WOUT_B = 165888
INV = 0x40000000

SF, SP, SW0, SWO, SO = 20, 24, 28, 32, 36
sW, sX0, sY0, sTY, sG, sH = 40, 41, 42, 43, 45, 46
sT0, sT1, sT2, sT3 = 47, 48, 49, 50
sXO = 51
sM = 52
sWL = 54
sYG = 55
sPO = 56
sOROW = 57
sOSTEP = 58
sPOS = 59
sPL, sPLS = 14, 15
sWG = 18
sTCH = 19
sMG, sSG = 3, 2
sWGID = 101
sSTAMP = 60
vOUT2, vLANE, vM = 0, 1, 2
vROW = 3
vWE, vWO_ = 12, 15
vWL, vPL, vOUT = 18, 19, 20
vDW = 21
vT = 24
vXO, vDP = 30, 31
vFR = 32; NB = 8
vACC = 64
vLA = 148
vLa = 172
vLp = 176
WV = 184
vOR1, vOR2, vOG1, vOG2 = 180, 181, 182, 183
SS = 208; OP = 16*SS; OB = WB
XREG = [144, 216, 228, 240]

e = Emit()
V = lambda n, k=1: R('v', n, k)
nstamp = [0]
def stamp(tag, rt=False):
    if not args.stamps: return
    if args.early and tag in ("S3 end","S4 end","S5 end","S6 end","row2 done","row5 done","row8 done","end") and not rt: return
    if not args.early and tag.startswith("E:"): return
    if tag.startswith("M:") and not args.mid: return
    if tag.startswith("P:") and not args.st2: return
    if args.clk and not rt and tag not in ("start", "S1 end", "S2 end", "S5 end", "row2 done", "stores done"): return
    if args.lo and not (tag.startswith("L:") or tag in ("start", "stores done") or rt): return
    if args.st2 and tag in ("S3 end","S4 end","S5 end","S7 end","row2 done","end") and not rt: return
    if args.mid and tag in ("B0 wait done","X0 landed","S1 end","X1 landed","S2 end","S7 end","row2 done"): return
    SKIPST = ("row5 done", "row8 done", "S6 end")
    if tag in SKIPST: return
    k = nstamp[0]; nstamp[0] += 1
    assert sSTAMP + 2*k + 1 < 93
    e.raw(f"{'s_memrealtime' if rt else 's_memtime'} s[{sSTAMP+2*k}:{sSTAMP+2*k+1}]")
    if args.clk and not rt and tag in ("S1 end", "S2 end", "S5 end", "row2 done"):
        k = nstamp[0]; nstamp[0] += 1
        e.raw(f"s_memrealtime s[{sSTAMP+2*k}:{sSTAMP+2*k+1}]")

def wreg(j, dip, t):
    idx = (dip*3 + t)*4
    if j < 7: return ('a', 36*j + idx)
    return ('v', WV + 36*(j-7) + idx)
def wlreg(t, s): return ('v', WV + (t*3 + s)*4)
def acc(o, t): return ('v', vACC + 12*o + 4*t)
def xreg(n, s): return ('a', XREG[n] + 4*s)

lab = [0]
def newlabel(p="L"):
    lab[0] += 1; return f"{p}_{lab[0]}"
class Region:
    def __init__(self, cmp, drain=True): self.cmp = cmp; self.drain = drain
    def __enter__(self):
        self.l = newlabel("Lskip")
        e.salu(self.cmp)
        e.raw(f"s_cbranch_scc0 {self.l}")
        e.region_begin()
    def __exit__(self, *a):
        e.region_end(self.drain)
        e.label(self.l)
def if_else(cmp, fa, fb_):
    le, lj = newlabel("Lelse"), newlabel("Ljoin")
    e.salu(cmp); e.raw(f"s_cbranch_scc0 {le}")
    s0 = e.snapshot()
    fa(); e.raw(f"s_branch {lj}")
    sa = e.snapshot(); e.restore(s0)
    e.label(le); fb_()
    sb = e.snapshot(); e.label(lj); e.merge(sa, sb)
vq = []
def vm_issue(tag): vq.append(tag)
def vm_wait(*tags):
    last = max(i for i, t in enumerate(vq) if t in tags)
    e.wait_vm(len(vq) - 1 - last)
def run(ops):
    for f in ops: f()
content = {}
def setc(regs, tag):
    for r in regs: content[r] = tag
def chk(regs, tag):
    for r in regs: assert content.get(r) == tag, (r, content.get(r), tag)

hdr = open("standalone__detection_seg_fpn_lateral__vision.s.ref").read().split("\n")
out = []
for l in hdr:
    if l.startswith("; @launch"): break
    out.append(l)
out.append(f"; @launch grid=(256,1,1) block=(256,1,1) lds={LDS}")
out.append('.amdgcn_target "amdgcn-amd-amdhsa--gfx950"')
out.append("""; DESIGN NOTES (generated by a hand-written Python emitter; no compiler output)
;  * output rows are assembled in LDS and leave as whole 128-B lines""")
out.append(".text")
out.append(f".globl {args.name}")
out.append(".p2align 8")
out.append(f".type {args.name},@function")
out.append(f"{args.name}:")

stamp("start"); stamp("start", rt=True)
e.salu("s_cmpk_ge_u32 s2, 256")
e.raw("s_cbranch_scc1 L_end")
e.raw("s_load_dwordx8 s[4:11], s[0:1], 0")
e.raw("s_load_dwordx2 s[12:13], s[0:1], 32")
if args.t2:
    e.raw("s_getpc_b64 s[94:95]")
    e.label("L_pc0")
    e.salu(f"s_lshr_b32 s93, s2, 3")
    e.salu(f"s_mulk_i32 s93, {64*args.t2}")
    e.salu(f"s_min_u32 s93, s93, L_end-L_pc0-{616 + 64*(args.t2-1)}")
    e.salu("s_add_u32 s94, s94, s93")
    e.salu("s_addc_u32 s95, s95, 0")
    for k in range(args.t2): e.raw(f"s_load_dword s93, s[94:95], {616 + 64*k}")
if args.stamps:
    e.raw("s_load_dwordx2 s[16:17], s[0:1], 48")
    e.salu(f"s_mov_b32 s{sWGID}, s2")
e.valu("v_lshrrev_b32 v24, 6, v0", w=V(24), r=V(0))
e.valu(f"v_and_b32 v{vLANE}, 63, v0", w=V(vLANE), r=V(0))
e.valu(f"v_readfirstlane_b32 s{sW}, v24", r=V(24), sw=[sW], rfl=True)
if args.tw:
    e.raw("s_getpc_b64 s[94:95]")
    e.salu(f"s_mul_i32 s93, s{sW}, {64*args.tw}", sr=[sW])
    e.salu("s_add_u32 s94, s94, s93")
    e.salu("s_addc_u32 s95, s95, 0")
    for k in range(args.tw): e.raw(f"s_load_dword s93, s[94:95], {600 + 64*k}")
e.salu(f"s_lshr_b32 s{sTCH}, s2, 3")
e.salu(f"s_mov_b32 s98, s{sTCH}")
if args.map == 0:
    e.salu(f"s_and_b32 s{sT2}, s2, 1")
    e.salu(f"s_lshl_b32 s{sT2}, s{sT2}, 3")
    e.salu(f"s_and_b32 s{sT3}, s{sTCH}, 7")
    e.salu(f"s_add_u32 s{sTY}, s{sT2}, s{sT3}")
    e.salu(f"s_and_b32 s{sT2}, s2, 6")
    e.salu(f"s_lshl_b32 s{sT2}, s{sT2}, 1")
    e.salu(f"s_lshr_b32 s{sT3}, s2, 6")
    e.salu(f"s_add_u32 s{sT2}, s{sT2}, s{sT3}")
elif args.map == 1:
    e.salu(f"s_and_b32 s{sT2}, s2, 7")
    e.salu(f"s_lshl_b32 s{sT2}, s{sT2}, 1")
    e.salu(f"s_and_b32 s{sT3}, s{sTCH}, 1")
    e.salu(f"s_add_u32 s{sTY}, s{sT2}, s{sT3}")
    e.salu(f"s_lshr_b32 s{sT2}, s2, 4")
elif args.map == 2:
    e.salu(f"s_and_b32 s{sT2}, s2, 3")
    e.salu(f"s_lshl_b32 s{sT2}, s{sT2}, 2")
    e.salu(f"s_and_b32 s{sT3}, s{sTCH}, 3")
    e.salu(f"s_add_u32 s{sTY}, s{sT2}, s{sT3}")
    e.salu(f"s_and_b32 s{sT2}, s2, 4")
    e.salu(f"s_lshl_b32 s{sT2}, s{sT2}, 1")
    e.salu(f"s_lshr_b32 s{sT3}, s2, 5")
    e.salu(f"s_add_u32 s{sT2}, s{sT2}, s{sT3}")
else:
    e.salu(f"s_lshr_b32 s{sTY}, s2, 4")
    e.salu(f"s_and_b32 s{sT2}, s2, 15")
e.salu(f"s_mulk_i32 s{sTCH}, {41*128}")
e.salu(f"s_mul_i32 s{sX0}, s{sT2}, 14")
e.salu(f"s_mul_i32 s{sY0}, s{sTY}, 14")
e.salu(f"s_lshr_b32 s{sG}, s{sW}, 1", sr=[sW])
e.salu(f"s_and_b32 s{sH}, s{sW}, 1")
e.salu(f"s_mul_i32 s{sSG}, s{sG}, -2")
e.salu(f"s_add_u32 s{sSG}, s{sSG}, 1")
e.salu(f"s_mul_i32 s{sYG}, s{sG}, 15")
e.salu(f"s_add_u32 s{sYG}, s{sYG}, s{sY0}")
e.salu(f"s_sub_u32 s{sYG}, s{sYG}, 1")
e.salu(f"s_lshr_b32 s{sPO}, s{sY0}, 1")
e.salu(f"s_lshl_b32 s{sT1}, s{sG}, 3")
e.salu(f"s_add_u32 s{sPO}, s{sPO}, s{sT1}")
e.salu(f"s_sub_u32 s{sPO}, s{sPO}, 1")
e.salu(f"s_mulk_i32 s{sPO}, {CROWB}")
e.salu(f"s_mov_b32 s{sPOS}, s{sSG}")
e.salu(f"s_mulk_i32 s{sPOS}, {CROWB}")
e.salu(f"s_lshl_b32 s{sPLS}, s{sSG}, 11")
e.salu(f"s_lshl_b32 s{sPL}, s{sG}, 4")
e.salu(f"s_add_u32 s{sPL}, s{sPL}, s{sH}")
e.salu(f"s_add_u32 s{sPL}, s{sPL}, {PB // 1024}")
e.salu(f"s_lshl_b32 s{sPL}, s{sPL}, 10")
assert PB % 1024 == 0 and PB // 1024 <= 64
e.valu(f"v_mov_b32 v29, {INV:#x}", w=V(29))
vD0 = vFR
e.valu(f"v_lshlrev_b32 v{vD0}, 4, v{vLANE}", w=V(vD0), r=V(vLANE))
e.valu(f"v_and_b32 v25, 32, v{vLANE}", w=V(25), r=V(vLANE))
e.valu(f"v_xor_b32 v{vD0+1}, v25, v{vD0}", w=V(vD0+1), r=V(25)+V(vD0))
e.valu(f"v_xor_b32 v{vD0+2}, 32, v{vD0}", w=V(vD0+2), r=V(vD0))
e.valu(f"v_lshlrev_b32 v{vD0+4}, 7, v{vLANE}", w=V(vD0+4), r=V(vLANE))
e.salu(f"s_sub_u32 s{sT1}, s{sX0}, 1")
e.salu(f"s_movk_i32 s{sT0}, 192")
e.valu(f"v_and_b32 v24, 15, v{vLANE}", w=V(24), r=V(vLANE))
e.valu(f"v_lshrrev_b32 v25, 4, v{vLANE}", w=V(25), r=V(vLANE))
e.valu(f"v_add_u32 v27, s{sT1}, v24", w=V(27), r=V(24))
e.valu("v_cmp_gt_u32 vcc, 224, v27", r=V(27), sw=["vcc"])
e.valu(f"v_mul_u32_u24 v28, s{sT0}, v27", w=V(28), r=V(27))
e.valu("v_lshl_add_u32 v28, v25, 4, v28", w=V(28), r=V(25)+V(28))
e.valu(f"v_cndmask_b32 v{vXO}, v29, v28, vcc", w=V(vXO), r=V(29)+V(28), sr=["vcc"])
e.salu(f"s_cmp_eq_u32 s{sT2}, 0")
e.salu(f"s_cselect_b32 s{sT1}, s{sT0}, 0")
e.salu(f"s_cmp_eq_u32 s{sT2}, 15")
e.salu(f"s_cselect_b32 s{sT3}, s{sT0}, s{sT1}")
e.salu(f"s_sub_u32 s{sT3}, {9*192}, s{sT3}")
e.salu(f"s_lshl_b32 s{sM}, s{sH}, 10")
e.salu(f"s_sub_u32 s{sM}, s{sM}, s{sT1}")
e.valu(f"v_add_u32 v26, s{sM}, v{vD0}", w=V(26), r=V(vD0))
e.valu(f"v_cmp_gt_u32 vcc, s{sT3}, v26", r=V(26), sw=["vcc"])
e.salu(f"s_mulk_i32 s{sT2}, {7*192}")
e.salu(f"s_add_u32 s{sT2}, s{sT2}, s{sT1}")
e.salu(f"s_sub_u32 s{sT2}, s{sT2}, s{sT0}")
e.valu(f"v_add_u32 v26, s{sT2}, v26", w=V(26), r=V(26))
e.valu(f"v_cndmask_b32 v{vDP}, v29, v26, vcc", w=V(vDP), r=V(29)+V(26), sr=["vcc"])
e.salu(f"s_mov_b32 s{SF+3}, 0x20000")
e.salu(f"s_mov_b32 s{SF+2}, {FINE_B}")
e.salu(f"s_mov_b32 s{SP+2}, {COARSE_B}")
e.salu(f"s_movk_i32 s{SW0+2}, {WLAT_B}")
e.salu(f"s_mov_b32 s{SWO+2}, {WOUT_B}")
for srd in (SP, SW0, SWO): e.salu(f"s_mov_b32 s{srd+3}, s{SF+3}")
e.salu(f"s_mov_b32 s{sT3}, s{sW}")
e.salu(f"s_mulk_i32 s{sT3}, 6144")
stamp("E:pre-kernarg-wait")
e.raw("s_waitcnt lgkmcnt(0)")
stamp("E:kernarg")
for srd, p in ((SW0, 8), (SWO, 10), (SF, 4), (SP, 6)):
    e.salu(f"s_mov_b64 s[{srd}:{srd+1}], s[{p}:{p+1}]")

GSLOT = {0: 2, 1: 0, 2: 2, 3: 0, 4: 3}
def slot_of(j): return 0 if j < 0 else GSLOT[j // 2] + (j % 2)
def group_ops(G):
    ops = []
    cnt = G < 4
    for blk in range(3):
        def f(blk=blk):
            e.salu(f"s_add_u32 m0, s{sWL}, {GSLOT[G]*WS + blk*6144}", m0=True)
            e.salu(f"s_add_u32 s{sT2}, s{sWG}, {2*G*6144 + blk*55296}")
            e.vmem(f"buffer_load_dwordx4 v{vDW}, s[{SWO}:{SWO+3}], s{sT2} offen lds", r=V(vDW), dma=True)
            if cnt: vm_issue(f"G{G}")
        ops.append(f)
        for p in (1, 2):
            def f(p=p):
                e.vmem(f"buffer_load_dwordx4 v{vDW+p}, s[{SWO}:{SWO+3}], s{sT2} offen offset:{1024*p} lds", r=V(vDW+p), dma=True)
                if cnt: vm_issue(f"G{G}")
            ops.append(f)
    return ops
def p_ops(crp, tag):
    def f():
        if crp == 0:
            e.salu(f"s_mov_b32 m0, s{sPL}", m0=True)
            e.salu(f"s_mul_i32 s{sT1}, s{sG}, 15")
            e.salu(f"s_cmp_eq_u32 s{sTY}, s{sT1}")
            e.salu(f"s_cselect_b32 s{SP+2}, 0, {COARSE_B}")
            e.salu(f"s_cselect_b32 s{sT0}, 0, s{sPO}")
        else:
            e.salu(f"s_mul_i32 s{sT1}, s{sPLS}, {crp}")
            e.salu(f"s_add_u32 m0, s{sPL}, s{sT1}", m0=True)
            e.salu(f"s_mul_i32 s{sT0}, s{sPOS}, {crp}")
            e.salu(f"s_add_u32 s{sT0}, s{sT0}, s{sPO}")
        e.vmem(f"buffer_load_dwordx4 v{vDP}, s[{SP}:{SP+3}], s{sT0} offen {args.inflag} lds", r=V(vDP), dma=True)
        vm_issue(tag)
        if crp == 0: e.salu(f"s_mov_b32 s{SP+2}, {COARSE_B}")
    return [f]
RB = [3, 5, 1, 7]; RH = [1, 1, 1, -7]
def x_ops(n):
    ops = []
    for s in range(3):
        def f(s=s):
            if s == 0:
                if RH[n] == 1: e.salu(f"s_add_u32 s{sXO}, s{sH}, {RB[n]}")
                else:
                    e.salu(f"s_mul_i32 s{sXO}, s{sH}, {RH[n]}")
                    e.salu(f"s_add_u32 s{sXO}, s{sXO}, {RB[n]}")
                e.salu(f"s_mul_i32 s{sXO}, s{sXO}, s{sSG}")
                e.salu(f"s_add_u32 s{sXO}, s{sXO}, s{sYG}")
                if n == 3:
                    e.salu(f"s_cmp_ge_u32 s{sXO}, 224")
                    e.salu(f"s_cselect_b32 s{SF+2}, 0, {FINE_B}")
                    e.salu(f"s_cselect_b32 s{sXO}, 0, s{sXO}")
                e.salu(f"s_mul_i32 s{sXO}, s{sXO}, {ROWB}")
            k, r0 = xreg(n, s)
            e.vload(f"buffer_load_dwordx4 {rs(k, r0, 4)}, v{vXO}, s[{SF}:{SF+3}], s{sXO} offen offset:{64*s} {args.inflag}", R(k, r0, 4), r=V(vXO))
            vm_issue(f"X{n}"); setc(R(k, r0, 4), ("x", n))
        ops.append(f)
    return ops

pass
def code_touch():
    if not args.ctouch: return
    e.raw("s_getpc_b64 s[96:97]")
    e.label("L_pc")
    e.salu(f"s_mulk_i32 s98, 384")
    e.salu("s_min_u32 s98, s98, L_end-L_pc-320")
    e.salu("s_add_u32 s96, s96, s98")
    e.salu("s_addc_u32 s97, s97, 0")
    for k in range(6): e.raw(f"s_load_dword s99, s[96:97], {64*k}")
def w1_a():
    for half in range(2):
        e.salu(f"s_add_u32 m0, s{sT3}, {WB + half*3072}", m0=True)
        if half: e.salu(f"s_addk_i32 s{sT3}, 3072")
        for p in range(3):
            e.vmem(f"buffer_load_dwordx4 v{vD0+p}, s[{SW0}:{SW0+3}], s{sT3} offen offset:{1024*p} lds", r=V(vD0+p), dma=True)
def w1_b():
    if not args.notouch:
        e.salu("s_mov_b32 exec_hi, 0x1ff")
        e.vload(f"buffer_load_dword v{vD0+5}, v{vD0+4}, s[{SWO}:{SWO+3}], s{sTCH} offen", V(vD0+5), r=V(vD0+4))
        e.salu("s_mov_b32 exec_hi, -1")
if args.tlate:
    with Region(f"s_cmp_lt_u32 s{sW}, 3"): w1_a()
    vm_issue("WL")
    run(p_ops(2, "PA") + x_ops(0) + p_ops(3, "PB"))
    with Region(f"s_cmp_eq_u32 s{sW}, 3"): w1_b()
else:
    if_else(f"s_cmp_lt_u32 s{sW}, 3", w1_a, w1_b)
    vm_issue("WL")
    run(p_ops(2, "PA") + x_ops(0) + p_ops(3, "PB"))
stamp("E:W1 issued")
if args.cpos == 0: code_touch()

e.salu(f"s_mul_i32 s{sT3}, s{sH}, 3072")
for p in range(3):
    e.valu(f"v_add_u32 v{vDW+p}, s{sT3}, v{vD0+p}", w=V(vDW+p), r=V(vD0+p))
e.salu(f"s_mul_i32 s{sWG}, s{sG}, 6144")
e.salu(f"s_mul_i32 s{sWL}, s{sG}, {WS}")
e.salu(f"s_add_u32 s{sWL}, s{sWL}, s{sT3}")
e.salu(f"s_add_u32 s{sWL}, s{sWL}, {WB}")
g0 = group_ops(0)
if args.lo == 1:
    for tg in ("WL", "PA", "X0", "PB"):
        vm_wait(tg); stamp("L:" + tg)
    e.raw("s_branch L_fin")
if args.lo == 2:
    run(g0); stamp("L:g0 issued"); run(x_ops(1)); stamp("L:x1 issued")
    for tg in ("X0", "PB", "G0", "X1"):
        vm_wait(tg); stamp("L:" + tg)
    e.raw("s_branch L_fin")
    del vq[-12:]
run(g0[:3])
e.valu("v_lshrrev_b32 v26, 2, v24", w=V(26), r=V(24))
e.valu("v_lshl_add_u32 v26, v25, 3, v26", w=V(26), r=V(25)+V(26))
e.valu("v_mul_u32_u24 v26, 192, v26", w=V(26), r=V(26))
e.valu(f"v_and_b32 v27, 3, v{vLANE}", w=V(27), r=V(vLANE))
e.valu("v_and_b32 v28, 1, v25", w=V(28), r=V(25))
e.valu("v_lshlrev_b32 v28, 5, v28", w=V(28), r=V(28))
e.valu(f"v_lshlrev_b32 v{vWL}, 4, v27", w=V(vWL), r=V(27))
e.valu(f"v_xor_b32 v{vWL}, v{vWL}, v28", w=V(vWL), r=V(vWL)+V(28))
e.valu(f"v_add_u32 v{vWL}, v{vWL}, v26", w=V(vWL), r=V(vWL)+V(26))
e.valu(f"v_add_u32 v{vWL}, {WB}, v{vWL}", w=V(vWL), r=V(vWL))
e.valu("v_lshl_add_u32 v26, v27, 3, v26", w=V(26), r=V(27)+V(26))
e.salu(f"s_mul_i32 s{sT0}, s{sH}, 96")
e.salu(f"s_add_u32 s{sT0}, s{sT0}, {WB}")
e.valu(f"v_add_u32 v26, s{sT0}, v26", w=V(26), r=V(26))
e.salu(f"s_mul_i32 s{sT0}, s{sH}, -2")
e.salu(f"s_add_u32 s{sT0}, s{sT0}, 1")
e.valu(f"v_mul_i32_i24 v28, s{sT0}, v28", w=V(28), r=V(28))
e.valu("v_add_u32 v27, v26, v28", w=V(27), r=V(26)+V(28))
e.valu("v_sub_u32 v26, v26, v28", w=V(26), r=V(26)+V(28))
e.salu(f"s_mul_i32 s{sT0}, s{sG}, 12288")
e.salu(f"s_sub_u32 s{sT1}, 12288, s{sT0}")
e.valu(f"v_add_u32 v{vWE}, s{sT0}, v27", w=V(vWE), r=V(27))
e.valu(f"v_add_u32 v{vWE+1}, 6144, v27", w=V(vWE+1), r=V(27))
e.valu(f"v_add_u32 v{vWE+2}, s{sT1}, v27", w=V(vWE+2), r=V(27))
e.valu(f"v_add_u32 v{vWO_}, s{sT0}, v26", w=V(vWO_), r=V(26))
e.valu(f"v_add_u32 v{vWO_+1}, 6144, v26", w=V(vWO_+1), r=V(26))
e.valu(f"v_add_u32 v{vWO_+2}, s{sT1}, v26", w=V(vWO_+2), r=V(26))
e.valu(f"v_mul_u32_u24 v{vM}, {S}, v24", w=V(vM), r=V(24))
e.valu(f"v_lshl_add_u32 v{vM}, v25, 4, v{vM}", w=V(vM), r=V(25)+V(vM))
e.salu(f"s_mul_i32 s{sMG}, s{sG}, {15*MP}")
e.salu(f"s_mul_i32 s{sT1}, s{sSG}, {MP}")
e.valu(f"v_add_u32 v{vROW}, s{sMG}, v{vM}", w=V(vROW), r=V(vM))
for k in range(1, 9):
    e.valu(f"v_add_u32 v{vROW+k}, s{sT1}, v{vROW+k-1}", w=V(vROW+k), r=V(vROW+k-1))
e.salu(f"s_cmp_eq_u32 s{sH}, 1")
e.salu(f"s_cselect_b64 s[{sM}:{sM+1}], -1, 0")
for n in range(4):
    e.valu(f"v_cndmask_b32 v{vLa+n}, v{vROW+RB[n]}, v{vROW+RB[n]+RH[n]}, s[{sM}:{sM+1}]", w=V(vLa+n), r=V(vROW+RB[n])+V(vROW+RB[n]+RH[n]))
if args.zero:
    e.valu("v_cmp_lt_u32 vcc, 13, v24", r=V(24), sw=["vcc"])
    e.valu(f"v_add_u32 v26, {16*MP}, v{vM}", w=V(26), r=V(vM))
    for k in range(4): e.valu(f"v_mov_b32 v{vFR+8+k}, 0", w=V(vFR+8+k))
    for k in range(9):
        e.valu(f"v_cndmask_b32 v{vROW+k}, v{vROW+k}, v26, vcc", w=V(vROW+k), r=V(vROW+k)+V(26), sr=["vcc"])
    e.ds_write(f"ds_write_b128 v{vD0}, v[{vFR+8}:{vFR+11}] offset:{16*MP + 14*S}", V(vD0) + V(vFR+8, 4))
e.valu("v_add_u32 v26, 1, v24", w=V(26), r=V(24))
e.valu("v_lshrrev_b32 v26, 1, v26", w=V(26), r=V(26))
e.valu("v_mul_u32_u24 v26, 192, v26", w=V(26), r=V(26))
e.valu(f"v_lshl_add_u32 v26, v25, 4, v26", w=V(26), r=V(25)+V(26))
e.salu(f"s_lshl_b32 s{sT0}, s{sG}, 14")
e.salu(f"s_add_u32 s{sT0}, s{sT0}, {PB}")
e.valu(f"v_add_u32 v{vPL}, s{sT0}, v26", w=V(vPL), r=V(26))
for n, crp in enumerate((2, 3, 1)):
    e.salu(f"s_mul_i32 s{sT0}, s{sPLS}, {crp}")
    e.valu(f"v_add_u32 v{vLp+n}, s{sT0}, v{vPL}", w=V(vLp+n), r=V(vPL))
e.salu(f"s_mul_i32 s{sT0}, s{sPLS}, 4")
e.salu(f"s_cmp_eq_u32 s{sH}, 1")
e.salu(f"s_cselect_b32 s{sT0}, 0, s{sT0}")
e.valu(f"v_add_u32 v{vLp+3}, s{sT0}, v{vPL}", w=V(vLp+3), r=V(vPL))
e.valu(f"v_mul_u32_u24 v26, {SS}, v24", w=V(26), r=V(24))
e.salu(f"s_mul_i32 s{sT0}, s{sH}, 96")
e.salu(f"s_mul_i32 s{sT1}, s{sG}, {7*OP}")
e.salu(f"s_add_u32 s{sT1}, s{sT1}, {OB}")
e.salu(f"s_add_u32 s{sT0}, s{sT0}, s{sT1}")
e.valu(f"v_add_u32 v26, s{sT0}, v26", w=V(26), r=V(26))
e.valu("v_and_b32 v27, 1, v25", w=V(27), r=V(25))
e.valu("v_lshrrev_b32 v28, 1, v25", w=V(28), r=V(25))
e.valu(f"v_lshl_add_u32 v{vOUT}, v25, 3, v26", w=V(vOUT), r=V(25)+V(26))
e.valu("v_lshl_add_u32 v26, v27, 5, v26", w=V(26), r=V(27)+V(26))
e.valu(f"v_lshl_add_u32 v{vOUT2}, v28, 4, v26", w=V(vOUT2), r=V(28)+V(26))
e.salu(f"s_lshl_b32 s{sT0}, s{sH}, 6")
e.salu(f"s_mul_i32 s{sT2}, s{sH}, 24")
e.salu(f"s_add_u32 s{sT2}, s{sT2}, 128")
e.salu(f"s_mul_i32 s{sT3}, s{sX0}, 192")
for (sn, vr, vg) in ((sT0, vOR1, vOG1), (sT2, vOR2, vOG2)):
    e.valu(f"v_add_u32 v26, s{sn}, v{vLANE}", w=V(26), r=V(vLANE))
    e.valu("v_mul_u32_u24 v27, 5462, v26", w=V(27), r=V(26))
    e.valu("v_lshrrev_b32 v27, 16, v27", w=V(27), r=V(27))
    e.valu("v_lshlrev_b32 v26, 4, v26", w=V(26), r=V(26))
    e.valu(f"v_lshl_add_u32 v27, v27, 4, v26", w=V(27), r=V(27)+V(26))
    e.valu(f"v_add_u32 v{vr}, s{sT1}, v27", w=V(vr), r=V(27))
    e.valu(f"v_add_u32 v{vg}, s{sT3}, v26", w=V(vg), r=V(26))
e.salu(f"s_lshl_b32 s{sT0}, s{sH}, 3")
e.salu(f"s_sub_u32 s{sT0}, 24, s{sT0}")
e.valu(f"v_cmp_gt_u32 vcc, s{sT0}, v{vLANE}", r=V(vLANE), sw=["vcc"])
e.valu(f"v_cndmask_b32 v{vOG2}, v29, v{vOG2}, vcc", w=V(vOG2), r=V(29)+V(vOG2), sr=["vcc"])
e.valu(f"v_cndmask_b32 v{vOR2}, v{vOR1}, v{vOR2}, vcc", w=V(vOR2), r=V(vOR1)+V(vOR2), sr=["vcc"])
e.salu(f"s_mul_i32 s{sT0}, s{sG}, 13")
e.salu(f"s_add_u32 s{sT0}, s{sT0}, s{sY0}")
e.salu(f"s_mul_i32 s{sOROW}, s{sT0}, {ROWB}")
e.salu(f"s_mul_i32 s{sOSTEP}, s{sSG}, {ROWB}")

def pull_ops(j, order=(2, 1, 0)):
    slot = slot_of(j)
    ops = []
    if j < 0:
        for s in range(3):
            for t in range(6):
                for hh in range(2):
                    k, b = wlreg(t, s)
                    off = slot*WS + s*6144 + hh*768 + 64*(t >> 1) + 8*(t & 1)
                    def f(k=k, b=b, off=off, hh=hh):
                        e.ds_read(f"ds_read_b64_tr_b16 {rs(k, b+2*hh, 2)}, v{vWL} offset:{off}", R(k, b+2*hh, 2), V(vWL))
                        setc(R(k, b+2*hh, 2), "wl")
                    ops.append(f)
    else:
        for dip in order:
            for t in range(3):
                for hh in range(2):
                    k, b = wreg(j, dip, t)
                    va = (vWE if t % 2 == 0 else vWO_) + dip
                    off = slot*WS + hh*768 + 32*t
                    def f(k=k, b=b, off=off, hh=hh, va=va):
                        e.ds_read(f"ds_read_b64_tr_b16 {rs(k, b+2*hh, 2)}, v{va} offset:{off}", R(k, b+2*hh, 2), V(va))
                        setc(R(k, b+2*hh, 2), ("w", j))
                    f.ds = True
                    ops.append(f)
    return ops
def pull_last(j): return R(*wreg(j, 0, 2), 4)

def mix(a, b):
    if not a: return list(b)
    if not b: return list(a)
    res = []; bi = 0
    for n, x in enumerate(a):
        res.append(x)
        tgt = ((n + 1) * len(b)) // len(a)
        while bi < tgt: res.append(b[bi]); bi += 1
    return res + list(b[bi:])
NOP = lambda: None
def pad(ops, n): return list(ops) + [NOP] * max(0, n - len(ops))
def seg(main, fill):
    nm, nf = len(main), len(fill)
    fi = 0
    for n, m in enumerate(main):
        m()
        tgt = -(-(n + 1) * nf // nm) if nm else nf
        while fi < min(tgt, nf): fill[fi](); fi += 1
    while fi < nf: fill[fi](); fi += 1

vLB = 124
LSET = [vLA, vLA, vLA, vLA]
def lat_reads(n):
    A = LSET[n]
    ops = []
    for u in range(3):
        def f(u=u):
            e.ds_read(f"ds_read_b128 v[{A+8*u+4}:{A+8*u+7}], v{vLp+n} offset:{64*u}", V(A+8*u+4, 4), V(vLp+n))
            setc(V(A+8*u+4, 4), ("p", n))
        f.ds = True
        ops.append(f)
    return ops
def lat_unpack(n):
    A = LSET[n]
    ops = []
    for u in range(3):
        a = A + 8*u
        sq = [(a+0, a+4, 0), (a+1, a+4, 1), (a+2, a+5, 0), (a+3, a+5, 1),
              (a+4, a+6, 0), (a+5, a+6, 1), (a+6, a+7, 0), (a+7, a+7, 1)]
        for (d, s_, hi) in sq:
            def f(d=d, s_=s_, hi=hi):
                assert content[('v', s_)][0] == "p"
                tg = ("pu", content[('v', s_)][1])
                content[('v', d)] = tg
                if hi: e.valu(f"v_and_b32 v{d}, 0xffff0000, v{s_}", w=V(d), r=V(s_))
                else:  e.valu(f"v_lshlrev_b32 v{d}, 16, v{s_}", w=V(d), r=V(s_))
            ops.append(f)
    return ops
def lat_mfma(n, umajor=False):
    A = LSET[n]
    ops = []
    order = [(s, t) for u in range(3) for s in range(3) for t in (2*u, 2*u+1)] if umajor else [(s, t) for s in range(3) for t in range(6)]
    for (s, t) in order:
        def f(s=s, t=t):
            chk(R(*wlreg(t, s), 4), "wl"); chk(R(*xreg(n, s), 4), ("x", n)); chk(V(A+4*t, 4), ("pu", n))
            e.mfma(('v', A+4*t), wlreg(t, s), xreg(n, s), ('v', A+4*t))
        ops.append(f)
    return ops
def lat_chain(n):
    lm = lat_mfma(n)
    return [lm[6*s_ + t] for t in range(6) for s_ in range(3)]
def lat_store(n):
    A = LSET[n]
    ops = []
    for u in range(3):
        for d in range(4):
            def f(u=u, d=d):
                e.valu(f"v_cvt_pk_bf16_f32 v{A+8*u+d}, v{A+8*u+2*d}, v{A+8*u+2*d+1}", w=V(A+8*u+d), r=V(A+8*u+2*d, 2))
            ops.append(f)
        def f(u=u): e.ds_write(f"ds_write_b128 v{vLa+n}, v[{A+8*u}:{A+8*u+3}] offset:{64*u}", V(vLa+n) + V(A+8*u, 4))
        ops.append(f)
    return ops

inited = set(); done = set()
def conv_mfma(j, rp, dip, t, fr):
    o = rp - dip
    def f():
        first = (o, t) not in inited
        inited.add((o, t))
        chk(R(*wreg(j, dip, t), 4), ("w", j)); chk(V(fr, 4), ("f", rp, j))
        done.add((rp, j, dip, t))
        e.mfma(acc(o, t), wreg(j, dip, t), ('v', fr), None if first else acc(o, t))
    return f
def frag_read(j, rp, fr):
    dj, s = divmod(j, 3)
    def f():
        e.ds_read(f"ds_read_b128 v[{fr}:{fr+3}], v{vROW+rp} offset:{dj*S + 64*s}", V(fr, 4), V(vROW+rp))
        setc(V(fr, 4), ("f", rp, j))
    return f
def epilogue_ops(o):
    ops = []
    a = vACC + 12*o
    cv = [(a+0, a+0), (a+1, a+2), (a+2, a+4), (a+3, a+6), (a+8, a+8), (a+9, a+10)]
    for (d, s_) in cv:
        def f(d=d, s_=s_):
            assert all((o+dp, j, dp, (s_-a)//4) in done for dp in range(3) for j in range(9)), o
            e.valu(f"v_cvt_pk_bf16_f32 v{d}, v{s_}, v{s_+1}", w=V(d), r=V(s_, 2))
        ops.append(f)
    for d in range(2):
        def f(d=d):
            e.valu(f"v_permlane16_swap_b32 v{a+d}, v{a+2+d}", w=V(a+d)+V(a+2+d), r=V(a+d)+V(a+2+d), perm=True)
        ops.append(f)
    ops.append(lambda: e.ds_write(f"ds_write_b64 v{vOUT}, v[{a+8}:{a+9}] offset:{o*OP + 64}", V(a+8, 2) + V(vOUT)))
    ops.append(lambda: e.ds_write(f"ds_write_b128 v{vOUT2}, v[{a}:{a+3}] offset:{o*OP}", V(a, 4) + V(vOUT2)))
    return ops
def stf(o): return "" if o >= 7-args.lastplain else args.stflag
def store_ops(o):
    a = vACC + 12*o
    ops = []
    ops.append(lambda: e.ds_read(f"ds_read_b128 v[{a}:{a+3}], v{vOR1} offset:{o*OP}", V(a, 4), V(vOR1)))
    ops.append(lambda: e.ds_read(f"ds_read_b128 v[{a+4}:{a+7}], v{vOR2} offset:{o*OP}", V(a+4, 4), V(vOR2)))
    def so():
        e.salu(f"s_mul_i32 s{sT3}, s{sOSTEP}, {o}")
        e.salu(f"s_add_u32 s{sT3}, s{sT3}, s{sOROW}")
    ops += [so, NOP, NOP, NOP, NOP]
    if not args.nostore:
        ops.append(lambda: e.vmem(f"buffer_store_dwordx4 v[{a}:{a+3}], v{vOG1}, s[{SO}:{SO+3}], s{sT3} offen {stf(o)}",
                                  r=V(a, 4) + V(vOG1), wide_data=V(a, 4)))
        ops.append(NOP)
        ops.append(lambda: e.vmem(f"buffer_store_dwordx4 v[{a+4}:{a+7}], v{vOG2}, s[{SO}:{SO+3}], s{sT3} offen {stf(o)}",
                                  r=V(a+4, 4) + V(vOG2), wide_data=V(a+4, 4)))
    return ops
wq = []
def wait_writes():
    last = -1
    for i, d in enumerate(e.lgkm):
        if not d: last = i
    if last >= 0:
        n = len(e.lgkm) - 1 - last
        e.raw(f"s_waitcnt lgkmcnt({n})"); e.lgkm = e.lgkm[last+1:]

def dips_of(rp): return [d for d in (2, 1, 0) if 0 <= rp - d <= 6]
vis_row = {3: 2, 4: 2, 5: 3, 6: 3, 1: 4, 2: 4, 0: 5, 7: 5, 8: 5}
items = []
groups = {}
def add(name, rps, js, rowmajor=False):
    g = groups.setdefault(name, [])
    lst = [(rp, j) for rp in rps for j in js] if rowmajor else [(rp, j) for j in js for rp in rps]
    for rp, j in lst:
        g.append(len(items)); items.append((rp, j))
RA_, RB_, RC_, RD_ = (3, 4), (5, 6), (2, 1), (7, 8, 0)
add("2a", RA_, (0,)); add("2b", (3,), (1,)); add("2c", (4,), (1,))
add("3a", RB_, (0,)); add("3b", RB_, (1,)); add("3c", RA_, (2,))
add("4a", RB_, (2,)); add("4b", RA_, (3,))
add("5a", RB_, (3,)); add("5b", RC_, (0,))
add("6a", RC_, (1,)); add("6b", RC_, (2, 3)); add("6b", RD_, (0,)); add("6c", RD_, (1, 2, 3))
add("7a", (0, 1), (4, 5, 6)); add("7b", (0, 1), (7,))
add("8_2a", (2,), (4, 5)); add("8_2b", (2,), (6, 7)); add("8_2c", (0, 1, 2), (8,))
for r in range(3, 9): add(f"8_{r}", (r,), (4, 5, 6, 7, 8))
RING_END_IDX = groups["8_2a"][0]
assert sorted(items) == sorted((r, j) for r in range(9) for j in range(9))
fr_done = set()
PF = args.pf
fbmap = {}
def fb(n): return fbmap.get(n, vFR + 4*(n % NB))
def item_main(n):
    rp, j = items[n]
    return [conv_mfma(j, rp, dip, t, fb(n)) for dip in dips_of(rp) for t in range(3)]
def prefetch_ops(n, step, depth=None):
    ops = []
    ahead = 0
    lim = 9*(PF if depth is None else depth)
    for m in range(n, min(n + NB - 1, len(items))):
        rp, j = items[m]
        if m > n and ahead >= lim + 1: break
        if m not in fr_done:
            if vis_row[rp] > step: break
            fr_done.add(m); ops.append(frag_read(j, rp, fb(m)))
        ahead += 3*len(dips_of(rp))
    return ops
def read_op(m):
    rp, j = items[m]; fr_done.add(m); return frag_read(j, rp, fb(m))
def block_main(blk):
    lst = [(rp_ - d, t, n, d) for n in blk for rp_ in [items[n][0]] for d in dips_of(rp_) for t in range(3)]
    lst.sort(key=lambda x: (x[0], x[1]))
    return [conv_mfma(items[n][1], items[n][0], d, t, fb(n)) for (o, t, n, d) in lst]
def emit_main(main, fill, hooks):
    nm, nf = len(main), len(fill)
    fi = 0; pq = []
    for p, m in enumerate(main):
        if p in hooks:
            now, later = hooks[p]()
            while pq: pq.pop(0)()
            run(now); pq += later
        m()
        nds0 = e.nds
        if pq: pq.pop(0)()
        tgt = -(-(p + 1) * nf // nm)
        cnt = 0
        while fi < min(tgt, nf):
            f = fill[fi]
            if getattr(f, "ds", False) and e.nds > nds0 and (nf - fi) < (nm - p): break
            f(); fi += 1; cnt += 1
            if cnt >= 3: break
    while pq: pq.pop(0)()
    while fi < nf: fill[fi](); fi += 1
RING_END = [None]
def conv_seg(names, step, fill, k=None):
    k = k or args.chain
    idx = [n for nm_ in names for n in groups[nm_]]
    blocks = [idx[i:i+k] for i in range(0, len(idx), k)]
    main = []; hooks = {}
    for blk in blocks:
        for n in blk: assert vis_row[items[n][0]] <= step
        def hook(blk=blk):
            now = [read_op(n) for n in blk if n not in fr_done]
            later = []
            for m in range(blk[-1] + 1, min(blk[0] + NB, blk[-1] + 1 + args.chain, RING_END[0])):
                if m in fr_done: continue
                if vis_row[items[m][0]] > step: break
                later.append(read_op(m))
            return now, later
        hooks[len(main)] = hook
        main += block_main(blk)
    emit_main(main, fill, hooks)

e.salu(f"s_mov_b64 s[{SO}:{SO+1}], s[12:13]")
e.salu(f"s_mov_b32 s{SO+2}, {FINE_B}")
e.salu(f"s_mov_b32 s{SO+3}, 0x20000")
if args.cpos == 1: code_touch()
stamp("E:setup done"); vm_wait("WL"); stamp("B0 wait done"); e.barrier()
run(mix(pull_ops(-1), g0[3:]))
pass
stamp("P:pulled"); vm_wait("PA"); e.wait_lgkm0(); stamp("P:B1"); e.barrier()
run(lat_reads(0))
run(x_ops(1))
run(lat_unpack(0))
g1 = group_ops(1)
def lateral_first(n, fill_a, fill_b, stores=True):
    lm = lat_mfma(n); ls = lat_store(n)
    idx = [i for i, t in enumerate(vq) if t == f"X{n}"]
    stamp(f"P:preX{n}")
    for s_ in range(3):
        e.wait_vm(len(vq) - 1 - idx[s_])
        if s_ == 0: stamp(f"X{n} landed")
        if s_ < 2: seg(lm[6*s_:6*s_+6], (fill_a, fill_b)[s_])
    run(lm[12:])
    stamp(f"P:latm{n}")
    if stores: run(ls)
lateral_first(0, [], [], stores=False)
run(g1[:3])
run(lat_store(0))
stamp("P:preB2"); vm_wait("G0"); e.wait_lgkm0(); stamp("S1 end"); e.barrier()
RING_END[0] = RING_END_IDX
p0 = pull_ops(0); p1 = pull_ops(1); u1 = lat_unpack(1)
run(prefetch_ops(groups["2a"][0], 2, 1)); run(p0[:6])
m2 = [conv_mfma(0, items[n][0], d, t, fb(n)) for d in (2, 1, 0) for n in groups["2a"] for t in range(3)]
seg(m2[:6], p0[6:])
seg(m2[6:], mix(lat_reads(1) + prefetch_ops(groups["2b"][0], 2, 1) + p1[:12], g1[3:6]))
seg(item_main(groups["2b"][0])[:6], mix(p1[12:], g1[6:]) + u1[:4])
conv_seg_rest = item_main(groups["2b"][0])[6:]
seg(conv_seg_rest, u1[4:12])
run(u1[12:] + p_ops(1, "PC") + x_ops(2))
lateral_first(1, [], [], stores=False)
conv_seg(["2c"], 2, lat_store(1))
vm_wait("G1"); e.wait_lgkm0(); stamp("S2 end"); e.barrier()
e.refill = 7
g2 = group_ops(2); g3 = group_ops(3)
conv_seg(["3a", "3b"], 3, mix(pull_ops(2) + pull_ops(3)[:8], p_ops(4, "PD") + p_ops(0, "PD") + x_ops(3)))
conv_seg(["3c"], 3, pull_ops(3)[8:] + [NOP]*4)
vm_wait("X2"); e.wait_for(pull_last(3)); stamp("S3 end"); e.barrier()
conv_seg(["4a"], 3, lat_reads(2) + lat_unpack(2))
stamp("M:4a")
seg(lat_chain(2), g2[:3])
stamp("M:lat2")
conv_seg(["4b"], 3, lat_store(2) + g2[3:6])
stamp("M:4b")
vm_wait("X3"); e.wait_lgkm0(); stamp("S4 end"); e.barrier()
conv_seg(["5a"], 4, lat_reads(3) + mix(lat_unpack(3), g2[6:]))
stamp("M:5a")
seg(lat_chain(3), g3[:4])
stamp("M:lat3")
conv_seg(["5b"], 4, lat_store(3) + g3[4:6])
stamp("M:5b")
conv_seg(["6a"], 4, g3[6:])
stamp("M:6a")
vm_wait("G2"); e.wait_lgkm0(); stamp("S5 end"); e.barrier()
def g4blk(k):
    def f():
        with Region(f"s_cmp_eq_u32 s{sG}, 0"): run(group_ops(4)[3*k:3*k+3])
    return f
p4 = pull_ops(4, order=(0, 1, 2))
conv_seg(["6b"], 5, pull_ops(5) + p4[:12])
vm_wait("G3"); e.wait_for(pull_last(5)); stamp("S6 end"); e.barrier()
def g4one(k):
    def f():
        with Region(f"s_cmp_eq_u32 s{sG}, 0"): group_ops(4)[k]()
    return f
conv_seg(["6c"], 5, mix(p4[12:] + pull_ops(6), [g4blk(0), g4blk(1), g4blk(2), NOP]))
conv_seg(["7a"], 5, pull_ops(7) + [NOP]*3)
POOL = [vFR + 4*k for k in range(8)] + [vLA + 4*k for k in range(6)]
R2a = groups["8_2a"] + groups["8_2b"]; R2c = groups["8_2c"]
for k, n in enumerate(R2a): fbmap[n] = POOL[8 + k]
for k, n in enumerate(R2c): fbmap[n] = [POOL[12], POOL[13], POOL[7]][k]
for r in range(3, 9):
    for k, n in enumerate(groups[f"8_{r}"]): fbmap[n] = POOL[(0 if r % 2 else 8) + k]
def dsops(ops):
    for f in ops: f.ds = True
    return ops
conv_seg(["7b"], 5, dsops([read_op(n) for n in R2a]))
e.wait_vm(0); e.wait_for(pull_last(7)); stamp("S7 end"); e.barrier()
emit_main(block_main(R2a), pull_ops(8) + dsops([read_op(n) for n in R2c]) + [NOP]*6, {})
emit_main(block_main(R2c), dsops([read_op(n) for n in groups["8_3"]]) + [NOP]*8, {})
stamp("row2 done")
for r in range(3, 8):
    m = block_main(groups[f"8_{r}"])
    nxt = dsops([read_op(n) for n in groups[f"8_{r+1}"]])
    if r == 3:
        emit_main(m[:15], epilogue_ops(0), {})
        emit_main(m[15:30], epilogue_ops(1) + [NOP]*4, {})
        wait_writes(); e.barrier()
        s0 = store_ops(0); s1 = store_ops(1)
        emit_main(m[30:], nxt + s0[:3] + s1[:2] + [f for f in s0[3:] if f is not NOP], {})
        carry = [f for f in s1[2:] if f is not NOP]
    elif r < 7:
        emit_main(m[:15], carry + nxt, {}); carry = []
        emit_main(m[15:30], epilogue_ops(r - 2) + [NOP]*4, {})
        wait_writes(); e.barrier()
        emit_main(m[30:], store_ops(r - 2), {})
    else:
        emit_main(m[:15], nxt, {})
        emit_main(m[15:], epilogue_ops(5) + [NOP]*4, {})
        wait_writes(); e.barrier()
m = block_main(groups["8_8"]); ep6 = epilogue_ops(6)
emit_main(m[:12], store_ops(5), {})
emit_main(m[12:], ep6[:2], {})
run(ep6[2:4] + ep6[6:8] + ep6[9:10] + ep6[4:6] + ep6[8:9])
wait_writes(); e.barrier()
run([f for f in store_ops(6) if f is not NOP])
e.label("L_fin")
stamp("end")
if args.stamps:
    e.raw("s_waitcnt vmcnt(0)")
    stamp("stores done"); stamp("end", rt=True)
    e.raw("s_waitcnt lgkmcnt(0)")
    e.salu(f"s_lshl_b32 s{sT0}, s{sWGID}, 2")
    e.salu(f"s_add_u32 s{sT0}, s{sT0}, s{sW}")
    e.salu(f"s_lshl_b32 s{sT0}, s{sT0}, 8")
    e.salu("s_mov_b32 s20, s16"); e.salu("s_mov_b32 s21, s17"); e.salu("s_mov_b32 s22, 0x100000"); e.salu("s_mov_b32 s23, 0x20000")
    e.valu("v_mov_b32 v24, 0", w=V(24))
    e.raw("s_mov_b64 exec, 1")
    for k in range(nstamp[0]):
        e.valu(f"v_mov_b32 v26, s{sSTAMP+2*k}", w=V(26))
        e.valu(f"v_mov_b32 v27, s{sSTAMP+2*k+1}", w=V(27))
        e.vmem(f"buffer_store_dwordx2 v[26:27], v24, s[20:23], s{sT0} offen offset:{8*k}", r=V(24)+V(26, 2))
        e.raw("s_nop 1")
e.label("L_end")
e.raw("s_endpgm")

out.append(e.text())
out.append('.section .rodata,"a"')
out.append(".p2align 6")
out.append(f".amdhsa_kernel {args.name}")
out.append("  .amdhsa_next_free_vgpr 512")
out.append("  .amdhsa_next_free_sgpr 102")
out.append("  .amdhsa_accum_offset 256")
out.append("  .amdhsa_group_segment_fixed_size 0")
out.append("  .amdhsa_kernarg_size 56")
out.append("  .amdhsa_user_sgpr_count 2")
out.append("  .amdhsa_user_sgpr_kernarg_segment_ptr 1")
out.append("  .amdhsa_system_sgpr_workgroup_id_x 1")
out.append(".end_amdhsa_kernel")
print("\n".join(out))
nm = sum(1 for l in e.lines if "v_mfma" in l)
sys.stderr.write(f"nops={e.nops} waits={e.waits} stamps={nstamp[0]} lines={len(e.lines)} mfma={nm} vq={len(vq)} lds={LDS}\n")
```

```python
import sys, argparse
from emit import *

ap = argparse.ArgumentParser()
ap.add_argument("--stamps", action="store_true")
ap.add_argument("--name", default="standalone__detection_seg_fpn_lateral__vision_kernel")
ap.add_argument("--stflag", default="sc1")
ap.add_argument("--inflag", default="")
ap.add_argument("--nostore", action="store_true")
ap.add_argument("--pf", type=int, default=2)
ap.add_argument("--notouch", action="store_true")
ap.add_argument("--nobar", action="store_true")
ap.add_argument("--ctouch", action="store_true")
ap.add_argument("--top", type=int, default=0)
ap.add_argument("--zero", action="store_true")
ap.add_argument("--fin", type=int, default=0)
ap.add_argument("--t2", type=int, default=0)
ap.add_argument("--c64", action="store_true")
ap.add_argument("--cpos", type=int, default=0)
ap.add_argument("--chain", type=int, default=4)
ap.add_argument("--lastplain", type=int, default=0)
ap.add_argument("--early", action="store_true")
args = ap.parse_args()

ROWB = 43008; CROWB = 21504
S = 224; MB = 0; MP = 16*S
PB = 17*MP + 512; PP = 2048
WB = PB + 9*PP; WS = 18432
LDS = WB + 4*WS
FINE_B = 9633792; COARSE_B = 2408448; WLAT_B = 18432; WOUT_B = 165888
INV = 0x40000000

SF, SP, SW0, SWO, SO = 20, 24, 28, 32, 36
sW, sX0, sY0, sTY, sG, sH = 40, 41, 42, 43, 45, 46
sT0, sT1, sT2, sT3 = 47, 48, 49, 50
sXO = 51
sM = 52
sWL = 54
sYG = 55
sPO = 56
sOROW = 57
sOSTEP = 58
sPOS = 59
sPL, sPLS = 14, 15
sWG = 18
sTCH = 19
sMG, sSG = 3, 2
sWGID = 101
sSTAMP = 60
vOUT2, vLANE, vM = 0, 1, 2
vROW = 3
vWE, vWO_ = 12, 15
vWL, vPL, vOUT = 18, 19, 20
vDW = 21
vT = 24
vXO, vDP = 30, 31
vFR = 32; NB = 8
vACC = 64
vLA = 148
vLa = 172
vLp = 176
WV = 184
vOR1, vOR2, vOG1, vOG2 = 180, 181, 182, 183
SS = 208; OP = 16*SS; OB = WB
XREG = [144, 216, 228, 240]

e = Emit()
V = lambda n, k=1: R('v', n, k)
nstamp = [0]
def stamp(tag, rt=False):
    if not args.stamps: return
    if args.early and tag in ("S3 end","S4 end","S5 end","S6 end","row2 done","row5 done","row8 done","end") and not rt: return
    if not args.early and tag.startswith("E:"): return
    SKIPST = ("row5 done", "row8 done", "S6 end")
    if tag in SKIPST: return
    k = nstamp[0]; nstamp[0] += 1
    assert sSTAMP + 2*k + 1 < 93
    e.raw(f"{'s_memrealtime' if rt else 's_memtime'} s[{sSTAMP+2*k}:{sSTAMP+2*k+1}]")

def wreg(j, dip, t):
    idx = (dip*3 + t)*4
    if j < 7: return ('a', 36*j + idx)
    return ('v', WV + 36*(j-7) + idx)
def wlreg(t, s): return ('v', WV + (t*3 + s)*4)
def acc(o, t): return ('v', vACC + 12*o + 4*t)
def xreg(n, s): return ('a', XREG[n] + 4*s)

lab = [0]
def newlabel(p="L"):
    lab[0] += 1; return f"{p}_{lab[0]}"
class Region:
    def __init__(self, cmp, drain=True): self.cmp = cmp; self.drain = drain
    def __enter__(self):
        self.l = newlabel("Lskip")
        e.salu(self.cmp)
        e.raw(f"s_cbranch_scc0 {self.l}")
        e.region_begin()
    def __exit__(self, *a):
        e.region_end(self.drain)
        e.label(self.l)
def if_else(cmp, fa, fb_):
    le, lj = newlabel("Lelse"), newlabel("Ljoin")
    e.salu(cmp); e.raw(f"s_cbranch_scc0 {le}")
    s0 = e.snapshot()
    fa(); e.raw(f"s_branch {lj}")
    sa = e.snapshot(); e.restore(s0)
    e.label(le); fb_()
    sb = e.snapshot(); e.label(lj); e.merge(sa, sb)
vq = []
def vm_issue(tag): vq.append(tag)
def vm_wait(*tags):
    last = max(i for i, t in enumerate(vq) if t in tags)
    e.wait_vm(len(vq) - 1 - last)
def run(ops):
    for f in ops: f()
content = {}
def setc(regs, tag):
    for r in regs: content[r] = tag
def chk(regs, tag):
    for r in regs: assert content.get(r) == tag, (r, content.get(r), tag)

hdr = open("standalone__detection_seg_fpn_lateral__vision.s.ref").read().split("\n")
out = []
for l in hdr:
    if l.startswith("; @launch"): break
    out.append(l)
out.append(f"; @launch grid=(256,1,1) block=(256,1,1) lds={LDS}")
out.append('.amdgcn_target "amdgcn-amd-amdhsa--gfx950"')
out.append(".text")
out.append(f".globl {args.name}")
out.append(".p2align 8")
out.append(f".type {args.name},@function")
out.append(f"{args.name}:")

stamp("start"); stamp("start", rt=True)
e.salu("s_cmpk_ge_u32 s2, 256")
e.raw("s_cbranch_scc1 L_end")
e.raw("s_load_dwordx8 s[4:11], s[0:1], 0")
e.raw("s_load_dwordx2 s[12:13], s[0:1], 32")
if args.t2:
    e.raw("s_getpc_b64 s[94:95]")
    e.label("L_pc0")
    e.salu(f"s_lshr_b32 s93, s2, 3")
    e.salu(f"s_mulk_i32 s93, {64*args.t2}")
    e.salu(f"s_min_u32 s93, s93, L_end-L_pc0-{616 + 64*(args.t2-1)}")
    e.salu("s_add_u32 s94, s94, s93")
    e.salu("s_addc_u32 s95, s95, 0")
    for k in range(args.t2): e.raw(f"s_load_dword s93, s[94:95], {616 + 64*k}")
if args.stamps:
    e.raw("s_load_dwordx2 s[16:17], s[0:1], 48")
    e.salu(f"s_mov_b32 s{sWGID}, s2")
e.valu("v_lshrrev_b32 v24, 6, v0", w=V(24), r=V(0))
e.valu(f"v_and_b32 v{vLANE}, 63, v0", w=V(vLANE), r=V(0))
e.valu(f"v_readfirstlane_b32 s{sW}, v24", r=V(24), sw=[sW], rfl=True)
e.salu(f"s_lshr_b32 s{sTCH}, s2, 3")
e.salu(f"s_mov_b32 s98, s{sTCH}")
e.salu(f"s_and_b32 s{sT2}, s2, 1")
e.salu(f"s_lshl_b32 s{sT2}, s{sT2}, 3")
e.salu(f"s_and_b32 s{sT3}, s{sTCH}, 7")
e.salu(f"s_add_u32 s{sTY}, s{sT2}, s{sT3}")
e.salu(f"s_and_b32 s{sT2}, s2, 6")
e.salu(f"s_lshl_b32 s{sT2}, s{sT2}, 1")
e.salu(f"s_lshr_b32 s{sT3}, s2, 6")
e.salu(f"s_add_u32 s{sT2}, s{sT2}, s{sT3}")
e.salu(f"s_mulk_i32 s{sTCH}, {41*128}")
e.salu(f"s_mul_i32 s{sX0}, s{sT2}, 14")
e.salu(f"s_mul_i32 s{sY0}, s{sTY}, 14")
e.salu(f"s_lshr_b32 s{sG}, s{sW}, 1", sr=[sW])
e.salu(f"s_and_b32 s{sH}, s{sW}, 1")
e.salu(f"s_mul_i32 s{sSG}, s{sG}, -2")
e.salu(f"s_add_u32 s{sSG}, s{sSG}, 1")
e.salu(f"s_mul_i32 s{sYG}, s{sG}, 15")
e.salu(f"s_add_u32 s{sYG}, s{sYG}, s{sY0}")
e.salu(f"s_sub_u32 s{sYG}, s{sYG}, 1")
e.salu(f"s_lshr_b32 s{sPO}, s{sY0}, 1")
e.salu(f"s_lshl_b32 s{sT1}, s{sG}, 3")
e.salu(f"s_add_u32 s{sPO}, s{sPO}, s{sT1}")
e.salu(f"s_sub_u32 s{sPO}, s{sPO}, 1")
e.salu(f"s_mulk_i32 s{sPO}, {CROWB}")
e.salu(f"s_mov_b32 s{sPOS}, s{sSG}")
e.salu(f"s_mulk_i32 s{sPOS}, {CROWB}")
e.salu(f"s_lshl_b32 s{sPLS}, s{sSG}, 11")
e.salu(f"s_lshl_b32 s{sPL}, s{sG}, 4")
e.salu(f"s_add_u32 s{sPL}, s{sPL}, s{sH}")
e.salu(f"s_add_u32 s{sPL}, s{sPL}, {PB // 1024}")
e.salu(f"s_lshl_b32 s{sPL}, s{sPL}, 10")
assert PB % 1024 == 0 and PB // 1024 <= 64
e.valu(f"v_mov_b32 v29, {INV:#x}", w=V(29))
vD0 = vFR
e.valu(f"v_lshlrev_b32 v{vD0}, 4, v{vLANE}", w=V(vD0), r=V(vLANE))
e.valu(f"v_and_b32 v25, 32, v{vLANE}", w=V(25), r=V(vLANE))
e.valu(f"v_xor_b32 v{vD0+1}, v25, v{vD0}", w=V(vD0+1), r=V(25)+V(vD0))
e.valu(f"v_xor_b32 v{vD0+2}, 32, v{vD0}", w=V(vD0+2), r=V(vD0))
e.valu(f"v_lshlrev_b32 v{vD0+4}, 7, v{vLANE}", w=V(vD0+4), r=V(vLANE))
e.salu(f"s_sub_u32 s{sT1}, s{sX0}, 1")
e.salu(f"s_movk_i32 s{sT0}, 192")
e.valu(f"v_and_b32 v24, 15, v{vLANE}", w=V(24), r=V(vLANE))
e.valu(f"v_lshrrev_b32 v25, 4, v{vLANE}", w=V(25), r=V(vLANE))
e.valu(f"v_add_u32 v27, s{sT1}, v24", w=V(27), r=V(24))
e.valu("v_cmp_gt_u32 vcc, 224, v27", r=V(27), sw=["vcc"])
e.valu(f"v_mul_u32_u24 v28, s{sT0}, v27", w=V(28), r=V(27))
e.valu("v_lshl_add_u32 v28, v25, 4, v28", w=V(28), r=V(25)+V(28))
e.valu(f"v_cndmask_b32 v{vXO}, v29, v28, vcc", w=V(vXO), r=V(29)+V(28), sr=["vcc"])
e.salu(f"s_cmp_eq_u32 s{sT2}, 0")
e.salu(f"s_cselect_b32 s{sT1}, s{sT0}, 0")
e.salu(f"s_cmp_eq_u32 s{sT2}, 15")
e.salu(f"s_cselect_b32 s{sT3}, s{sT0}, s{sT1}")
e.salu(f"s_sub_u32 s{sT3}, {9*192}, s{sT3}")
e.salu(f"s_lshl_b32 s{sM}, s{sH}, 10")
e.salu(f"s_sub_u32 s{sM}, s{sM}, s{sT1}")
e.valu(f"v_add_u32 v26, s{sM}, v{vD0}", w=V(26), r=V(vD0))
e.valu(f"v_cmp_gt_u32 vcc, s{sT3}, v26", r=V(26), sw=["vcc"])
e.salu(f"s_mulk_i32 s{sT2}, {7*192}")
e.salu(f"s_add_u32 s{sT2}, s{sT2}, s{sT1}")
e.salu(f"s_sub_u32 s{sT2}, s{sT2}, s{sT0}")
e.valu(f"v_add_u32 v26, s{sT2}, v26", w=V(26), r=V(26))
e.valu(f"v_cndmask_b32 v{vDP}, v29, v26, vcc", w=V(vDP), r=V(29)+V(26), sr=["vcc"])
e.salu(f"s_mov_b32 s{SF+3}, 0x20000")
e.salu(f"s_mov_b32 s{SF+2}, {FINE_B}")
e.salu(f"s_mov_b32 s{SP+2}, {COARSE_B}")
e.salu(f"s_movk_i32 s{SW0+2}, {WLAT_B}")
e.salu(f"s_mov_b32 s{SWO+2}, {WOUT_B}")
for srd in (SP, SW0, SWO): e.salu(f"s_mov_b32 s{srd+3}, s{SF+3}")
e.salu(f"s_mov_b32 s{sT3}, s{sW}")
e.salu(f"s_mulk_i32 s{sT3}, 6144")
stamp("E:pre-kernarg-wait")
e.raw("s_waitcnt lgkmcnt(0)")
stamp("E:kernarg")
for srd, p in ((SW0, 8), (SWO, 10), (SF, 4), (SP, 6)):
    e.salu(f"s_mov_b64 s[{srd}:{srd+1}], s[{p}:{p+1}]")

GSLOT = {0: 2, 1: 0, 2: 2, 3: 0, 4: 3}
def slot_of(j): return 0 if j < 0 else GSLOT[j // 2] + (j % 2)
def group_ops(G):
    ops = []
    cnt = G < 4
    for blk in range(3):
        def f(blk=blk):
            e.salu(f"s_add_u32 m0, s{sWL}, {GSLOT[G]*WS + blk*6144}", m0=True)
            e.salu(f"s_add_u32 s{sT2}, s{sWG}, {2*G*6144 + blk*55296}")
            e.vmem(f"buffer_load_dwordx4 v{vDW}, s[{SWO}:{SWO+3}], s{sT2} offen lds", r=V(vDW), dma=True)
            if cnt: vm_issue(f"G{G}")
        ops.append(f)
        for p in (1, 2):
            def f(p=p):
                e.vmem(f"buffer_load_dwordx4 v{vDW+p}, s[{SWO}:{SWO+3}], s{sT2} offen offset:{1024*p} lds", r=V(vDW+p), dma=True)
                if cnt: vm_issue(f"G{G}")
            ops.append(f)
    return ops
def p_ops(crp, tag):
    def f():
        if crp == 0:
            e.salu(f"s_mov_b32 m0, s{sPL}", m0=True)
            e.salu(f"s_mul_i32 s{sT1}, s{sG}, 15")
            e.salu(f"s_cmp_eq_u32 s{sTY}, s{sT1}")
            e.salu(f"s_cselect_b32 s{SP+2}, 0, {COARSE_B}")
            e.salu(f"s_cselect_b32 s{sT0}, 0, s{sPO}")
        else:
            e.salu(f"s_mul_i32 s{sT1}, s{sPLS}, {crp}")
            e.salu(f"s_add_u32 m0, s{sPL}, s{sT1}", m0=True)
            e.salu(f"s_mul_i32 s{sT0}, s{sPOS}, {crp}")
            e.salu(f"s_add_u32 s{sT0}, s{sT0}, s{sPO}")
        e.vmem(f"buffer_load_dwordx4 v{vDP}, s[{SP}:{SP+3}], s{sT0} offen {args.inflag} lds", r=V(vDP), dma=True)
        vm_issue(tag)
        if crp == 0: e.salu(f"s_mov_b32 s{SP+2}, {COARSE_B}")
    return [f]
RB = [3, 5, 1, 7]; RH = [1, 1, 1, -7]
def x_ops(n):
    ops = []
    for s in range(3):
        def f(s=s):
            if s == 0:
                if RH[n] == 1: e.salu(f"s_add_u32 s{sXO}, s{sH}, {RB[n]}")
                else:
                    e.salu(f"s_mul_i32 s{sXO}, s{sH}, {RH[n]}")
                    e.salu(f"s_add_u32 s{sXO}, s{sXO}, {RB[n]}")
                e.salu(f"s_mul_i32 s{sXO}, s{sXO}, s{sSG}")
                e.salu(f"s_add_u32 s{sXO}, s{sXO}, s{sYG}")
                if n == 3:
                    e.salu(f"s_cmp_ge_u32 s{sXO}, 224")
                    e.salu(f"s_cselect_b32 s{SF+2}, 0, {FINE_B}")
                    e.salu(f"s_cselect_b32 s{sXO}, 0, s{sXO}")
                e.salu(f"s_mul_i32 s{sXO}, s{sXO}, {ROWB}")
            k, r0 = xreg(n, s)
            e.vload(f"buffer_load_dwordx4 {rs(k, r0, 4)}, v{vXO}, s[{SF}:{SF+3}], s{sXO} offen offset:{64*s} {args.inflag}", R(k, r0, 4), r=V(vXO))
            vm_issue(f"X{n}"); setc(R(k, r0, 4), ("x", n))
        ops.append(f)
    return ops

pass
def code_touch():
    if not args.ctouch: return
    e.raw("s_getpc_b64 s[96:97]")
    e.label("L_pc")
    e.salu(f"s_mulk_i32 s98, 384")
    e.salu("s_min_u32 s98, s98, L_end-L_pc-320")
    e.salu("s_add_u32 s96, s96, s98")
    e.salu("s_addc_u32 s97, s97, 0")
    for k in range(6): e.raw(f"s_load_dword s99, s[96:97], {64*k}")
def w1_a():
    for half in range(2):
        e.salu(f"s_add_u32 m0, s{sT3}, {WB + half*3072}", m0=True)
        if half: e.salu(f"s_addk_i32 s{sT3}, 3072")
        for p in range(3):
            e.vmem(f"buffer_load_dwordx4 v{vD0+p}, s[{SW0}:{SW0+3}], s{sT3} offen offset:{1024*p} lds", r=V(vD0+p), dma=True)
def w1_b():
    if not args.notouch:
        e.salu("s_mov_b32 exec_hi, 0x1ff")
        e.vload(f"buffer_load_dword v{vD0+5}, v{vD0+4}, s[{SWO}:{SWO+3}], s{sTCH} offen", V(vD0+5), r=V(vD0+4))
        e.salu("s_mov_b32 exec_hi, -1")
if_else(f"s_cmp_lt_u32 s{sW}, 3", w1_a, w1_b)
vm_issue("WL")
run(p_ops(2, "PA") + x_ops(0) + p_ops(3, "PB"))
stamp("E:W1 issued")
if args.cpos == 0: code_touch()

e.salu(f"s_mul_i32 s{sT3}, s{sH}, 3072")
for p in range(3):
    e.valu(f"v_add_u32 v{vDW+p}, s{sT3}, v{vD0+p}", w=V(vDW+p), r=V(vD0+p))
e.salu(f"s_mul_i32 s{sWG}, s{sG}, 6144")
e.salu(f"s_mul_i32 s{sWL}, s{sG}, {WS}")
e.salu(f"s_add_u32 s{sWL}, s{sWL}, s{sT3}")
e.salu(f"s_add_u32 s{sWL}, s{sWL}, {WB}")
g0 = group_ops(0)
run(g0[:3])
e.valu("v_lshrrev_b32 v26, 2, v24", w=V(26), r=V(24))
e.valu("v_lshl_add_u32 v26, v25, 3, v26", w=V(26), r=V(25)+V(26))
e.valu("v_mul_u32_u24 v26, 192, v26", w=V(26), r=V(26))
e.valu(f"v_and_b32 v27, 3, v{vLANE}", w=V(27), r=V(vLANE))
e.valu("v_and_b32 v28, 1, v25", w=V(28), r=V(25))
e.valu("v_lshlrev_b32 v28, 5, v28", w=V(28), r=V(28))
e.valu(f"v_lshlrev_b32 v{vWL}, 4, v27", w=V(vWL), r=V(27))
e.valu(f"v_xor_b32 v{vWL}, v{vWL}, v28", w=V(vWL), r=V(vWL)+V(28))
e.valu(f"v_add_u32 v{vWL}, v{vWL}, v26", w=V(vWL), r=V(vWL)+V(26))
e.valu(f"v_add_u32 v{vWL}, {WB}, v{vWL}", w=V(vWL), r=V(vWL))
e.valu("v_lshl_add_u32 v26, v27, 3, v26", w=V(26), r=V(27)+V(26))
e.salu(f"s_mul_i32 s{sT0}, s{sH}, 96")
e.salu(f"s_add_u32 s{sT0}, s{sT0}, {WB}")
e.valu(f"v_add_u32 v26, s{sT0}, v26", w=V(26), r=V(26))
e.salu(f"s_mul_i32 s{sT0}, s{sH}, -2")
e.salu(f"s_add_u32 s{sT0}, s{sT0}, 1")
e.valu(f"v_mul_i32_i24 v28, s{sT0}, v28", w=V(28), r=V(28))
e.valu("v_add_u32 v27, v26, v28", w=V(27), r=V(26)+V(28))
e.valu("v_sub_u32 v26, v26, v28", w=V(26), r=V(26)+V(28))
e.salu(f"s_mul_i32 s{sT0}, s{sG}, 12288")
e.salu(f"s_sub_u32 s{sT1}, 12288, s{sT0}")
e.valu(f"v_add_u32 v{vWE}, s{sT0}, v27", w=V(vWE), r=V(27))
e.valu(f"v_add_u32 v{vWE+1}, 6144, v27", w=V(vWE+1), r=V(27))
e.valu(f"v_add_u32 v{vWE+2}, s{sT1}, v27", w=V(vWE+2), r=V(27))
e.valu(f"v_add_u32 v{vWO_}, s{sT0}, v26", w=V(vWO_), r=V(26))
e.valu(f"v_add_u32 v{vWO_+1}, 6144, v26", w=V(vWO_+1), r=V(26))
e.valu(f"v_add_u32 v{vWO_+2}, s{sT1}, v26", w=V(vWO_+2), r=V(26))
e.valu(f"v_mul_u32_u24 v{vM}, {S}, v24", w=V(vM), r=V(24))
e.valu(f"v_lshl_add_u32 v{vM}, v25, 4, v{vM}", w=V(vM), r=V(25)+V(vM))
e.salu(f"s_mul_i32 s{sMG}, s{sG}, {15*MP}")
e.salu(f"s_mul_i32 s{sT1}, s{sSG}, {MP}")
e.valu(f"v_add_u32 v{vROW}, s{sMG}, v{vM}", w=V(vROW), r=V(vM))
for k in range(1, 9):
    e.valu(f"v_add_u32 v{vROW+k}, s{sT1}, v{vROW+k-1}", w=V(vROW+k), r=V(vROW+k-1))
e.salu(f"s_cmp_eq_u32 s{sH}, 1")
e.salu(f"s_cselect_b64 s[{sM}:{sM+1}], -1, 0")
for n in range(4):
    e.valu(f"v_cndmask_b32 v{vLa+n}, v{vROW+RB[n]}, v{vROW+RB[n]+RH[n]}, s[{sM}:{sM+1}]", w=V(vLa+n), r=V(vROW+RB[n])+V(vROW+RB[n]+RH[n]))
if args.zero:
    e.valu("v_cmp_lt_u32 vcc, 13, v24", r=V(24), sw=["vcc"])
    e.valu(f"v_add_u32 v26, {16*MP}, v{vM}", w=V(26), r=V(vM))
    for k in range(4): e.valu(f"v_mov_b32 v{vFR+8+k}, 0", w=V(vFR+8+k))
    for k in range(9):
        e.valu(f"v_cndmask_b32 v{vROW+k}, v{vROW+k}, v26, vcc", w=V(vROW+k), r=V(vROW+k)+V(26), sr=["vcc"])
    e.ds_write(f"ds_write_b128 v{vD0}, v[{vFR+8}:{vFR+11}] offset:{16*MP + 14*S}", V(vD0) + V(vFR+8, 4))
e.valu("v_add_u32 v26, 1, v24", w=V(26), r=V(24))
e.valu("v_lshrrev_b32 v26, 1, v26", w=V(26), r=V(26))
e.valu("v_mul_u32_u24 v26, 192, v26", w=V(26), r=V(26))
e.valu(f"v_lshl_add_u32 v26, v25, 4, v26", w=V(26), r=V(25)+V(26))
e.salu(f"s_lshl_b32 s{sT0}, s{sG}, 14")
e.salu(f"s_add_u32 s{sT0}, s{sT0}, {PB}")
e.valu(f"v_add_u32 v{vPL}, s{sT0}, v26", w=V(vPL), r=V(26))
for n, crp in enumerate((2, 3, 1)):
    e.salu(f"s_mul_i32 s{sT0}, s{sPLS}, {crp}")
    e.valu(f"v_add_u32 v{vLp+n}, s{sT0}, v{vPL}", w=V(vLp+n), r=V(vPL))
e.salu(f"s_mul_i32 s{sT0}, s{sPLS}, 4")
e.salu(f"s_cmp_eq_u32 s{sH}, 1")
e.salu(f"s_cselect_b32 s{sT0}, 0, s{sT0}")
e.valu(f"v_add_u32 v{vLp+3}, s{sT0}, v{vPL}", w=V(vLp+3), r=V(vPL))
e.valu(f"v_mul_u32_u24 v26, {SS}, v24", w=V(26), r=V(24))
e.salu(f"s_mul_i32 s{sT0}, s{sH}, 96")
e.salu(f"s_mul_i32 s{sT1}, s{sG}, {7*OP}")
e.salu(f"s_add_u32 s{sT1}, s{sT1}, {OB}")
e.salu(f"s_add_u32 s{sT0}, s{sT0}, s{sT1}")
e.valu(f"v_add_u32 v26, s{sT0}, v26", w=V(26), r=V(26))
e.valu("v_and_b32 v27, 1, v25", w=V(27), r=V(25))
e.valu("v_lshrrev_b32 v28, 1, v25", w=V(28), r=V(25))
e.valu(f"v_lshl_add_u32 v{vOUT}, v25, 3, v26", w=V(vOUT), r=V(25)+V(26))
e.valu("v_lshl_add_u32 v26, v27, 5, v26", w=V(26), r=V(27)+V(26))
e.valu(f"v_lshl_add_u32 v{vOUT2}, v28, 4, v26", w=V(vOUT2), r=V(28)+V(26))
e.salu(f"s_lshl_b32 s{sT0}, s{sH}, 6")
e.salu(f"s_mul_i32 s{sT2}, s{sH}, 24")
e.salu(f"s_add_u32 s{sT2}, s{sT2}, 128")
e.salu(f"s_mul_i32 s{sT3}, s{sX0}, 192")
for (sn, vr, vg) in ((sT0, vOR1, vOG1), (sT2, vOR2, vOG2)):
    e.valu(f"v_add_u32 v26, s{sn}, v{vLANE}", w=V(26), r=V(vLANE))
    e.valu("v_mul_u32_u24 v27, 5462, v26", w=V(27), r=V(26))
    e.valu("v_lshrrev_b32 v27, 16, v27", w=V(27), r=V(27))
    e.valu("v_lshlrev_b32 v26, 4, v26", w=V(26), r=V(26))
    e.valu(f"v_lshl_add_u32 v27, v27, 4, v26", w=V(27), r=V(27)+V(26))
    e.valu(f"v_add_u32 v{vr}, s{sT1}, v27", w=V(vr), r=V(27))
    e.valu(f"v_add_u32 v{vg}, s{sT3}, v26", w=V(vg), r=V(26))
e.salu(f"s_lshl_b32 s{sT0}, s{sH}, 3")
e.salu(f"s_sub_u32 s{sT0}, 24, s{sT0}")
e.valu(f"v_cmp_gt_u32 vcc, s{sT0}, v{vLANE}", r=V(vLANE), sw=["vcc"])
e.valu(f"v_cndmask_b32 v{vOG2}, v29, v{vOG2}, vcc", w=V(vOG2), r=V(29)+V(vOG2), sr=["vcc"])
e.valu(f"v_cndmask_b32 v{vOR2}, v{vOR1}, v{vOR2}, vcc", w=V(vOR2), r=V(vOR1)+V(vOR2), sr=["vcc"])
e.salu(f"s_mul_i32 s{sT0}, s{sG}, 13")
e.salu(f"s_add_u32 s{sT0}, s{sT0}, s{sY0}")
e.salu(f"s_mul_i32 s{sOROW}, s{sT0}, {ROWB}")
e.salu(f"s_mul_i32 s{sOSTEP}, s{sSG}, {ROWB}")

def pull_ops(j, order=(2, 1, 0)):
    slot = slot_of(j)
    ops = []
    if j < 0:
        for s in range(3):
            for t in range(6):
                for hh in range(2):
                    k, b = wlreg(t, s)
                    off = slot*WS + s*6144 + hh*768 + 64*(t >> 1) + 8*(t & 1)
                    def f(k=k, b=b, off=off, hh=hh):
                        e.ds_read(f"ds_read_b64_tr_b16 {rs(k, b+2*hh, 2)}, v{vWL} offset:{off}", R(k, b+2*hh, 2), V(vWL))
                        setc(R(k, b+2*hh, 2), "wl")
                    ops.append(f)
    else:
        for dip in order:
            for t in range(3):
                for hh in range(2):
                    k, b = wreg(j, dip, t)
                    va = (vWE if t % 2 == 0 else vWO_) + dip
                    off = slot*WS + hh*768 + 32*t
                    def f(k=k, b=b, off=off, hh=hh, va=va):
                        e.ds_read(f"ds_read_b64_tr_b16 {rs(k, b+2*hh, 2)}, v{va} offset:{off}", R(k, b+2*hh, 2), V(va))
                        setc(R(k, b+2*hh, 2), ("w", j))
                    f.ds = True
                    ops.append(f)
    return ops
def pull_last(j): return R(*wreg(j, 0, 2), 4)

def mix(a, b):
    if not a: return list(b)
    if not b: return list(a)
    res = []; bi = 0
    for n, x in enumerate(a):
        res.append(x)
        tgt = ((n + 1) * len(b)) // len(a)
        while bi < tgt: res.append(b[bi]); bi += 1
    return res + list(b[bi:])
NOP = lambda: None
def pad(ops, n): return list(ops) + [NOP] * max(0, n - len(ops))
def seg(main, fill):
    nm, nf = len(main), len(fill)
    fi = 0
    for n, m in enumerate(main):
        m()
        tgt = -(-(n + 1) * nf // nm) if nm else nf
        while fi < min(tgt, nf): fill[fi](); fi += 1
    while fi < nf: fill[fi](); fi += 1

vLB = 124
LSET = [vLA, vLA, vLA, vLA]
def lat_reads(n):
    A = LSET[n]
    ops = []
    for u in range(3):
        def f(u=u):
            e.ds_read(f"ds_read_b128 v[{A+8*u+4}:{A+8*u+7}], v{vLp+n} offset:{64*u}", V(A+8*u+4, 4), V(vLp+n))
            setc(V(A+8*u+4, 4), ("p", n))
        f.ds = True
        ops.append(f)
    return ops
def lat_unpack(n):
    A = LSET[n]
    ops = []
    for u in range(3):
        a = A + 8*u
        sq = [(a+0, a+4, 0), (a+1, a+4, 1), (a+2, a+5, 0), (a+3, a+5, 1),
              (a+4, a+6, 0), (a+5, a+6, 1), (a+6, a+7, 0), (a+7, a+7, 1)]
        for (d, s_, hi) in sq:
            def f(d=d, s_=s_, hi=hi):
                assert content[('v', s_)][0] == "p"
                tg = ("pu", content[('v', s_)][1])
                content[('v', d)] = tg
                if hi: e.valu(f"v_and_b32 v{d}, 0xffff0000, v{s_}", w=V(d), r=V(s_))
                else:  e.valu(f"v_lshlrev_b32 v{d}, 16, v{s_}", w=V(d), r=V(s_))
            ops.append(f)
    return ops
def lat_mfma(n, umajor=False):
    A = LSET[n]
    ops = []
    order = [(s, t) for u in range(3) for s in range(3) for t in (2*u, 2*u+1)] if umajor else [(s, t) for s in range(3) for t in range(6)]
    for (s, t) in order:
        def f(s=s, t=t):
            chk(R(*wlreg(t, s), 4), "wl"); chk(R(*xreg(n, s), 4), ("x", n)); chk(V(A+4*t, 4), ("pu", n))
            e.mfma(('v', A+4*t), wlreg(t, s), xreg(n, s), ('v', A+4*t))
        ops.append(f)
    return ops
def lat_chain(n):
    lm = lat_mfma(n)
    return [lm[6*s_ + t] for t in range(6) for s_ in range(3)]
def lat_store(n):
    A = LSET[n]
    ops = []
    for u in range(3):
        for d in range(4):
            def f(u=u, d=d):
                e.valu(f"v_cvt_pk_bf16_f32 v{A+8*u+d}, v{A+8*u+2*d}, v{A+8*u+2*d+1}", w=V(A+8*u+d), r=V(A+8*u+2*d, 2))
            ops.append(f)
        def f(u=u): e.ds_write(f"ds_write_b128 v{vLa+n}, v[{A+8*u}:{A+8*u+3}] offset:{64*u}", V(vLa+n) + V(A+8*u, 4))
        ops.append(f)
    return ops

inited = set(); done = set()
def conv_mfma(j, rp, dip, t, fr):
    o = rp - dip
    def f():
        first = (o, t) not in inited
        inited.add((o, t))
        chk(R(*wreg(j, dip, t), 4), ("w", j)); chk(V(fr, 4), ("f", rp, j))
        done.add((rp, j, dip, t))
        e.mfma(acc(o, t), wreg(j, dip, t), ('v', fr), None if first else acc(o, t))
    return f
def frag_read(j, rp, fr):
    dj, s = divmod(j, 3)
    def f():
        e.ds_read(f"ds_read_b128 v[{fr}:{fr+3}], v{vROW+rp} offset:{dj*S + 64*s}", V(fr, 4), V(vROW+rp))
        setc(V(fr, 4), ("f", rp, j))
    return f
def epilogue_ops(o):
    ops = []
    a = vACC + 12*o
    cv = [(a+0, a+0), (a+1, a+2), (a+2, a+4), (a+3, a+6), (a+8, a+8), (a+9, a+10)]
    for (d, s_) in cv:
        def f(d=d, s_=s_):
            assert all((o+dp, j, dp, (s_-a)//4) in done for dp in range(3) for j in range(9)), o
            e.valu(f"v_cvt_pk_bf16_f32 v{d}, v{s_}, v{s_+1}", w=V(d), r=V(s_, 2))
        ops.append(f)
    for d in range(2):
        def f(d=d):
            e.valu(f"v_permlane16_swap_b32 v{a+d}, v{a+2+d}", w=V(a+d)+V(a+2+d), r=V(a+d)+V(a+2+d), perm=True)
        ops.append(f)
    ops.append(lambda: e.ds_write(f"ds_write_b64 v{vOUT}, v[{a+8}:{a+9}] offset:{o*OP + 64}", V(a+8, 2) + V(vOUT)))
    ops.append(lambda: e.ds_write(f"ds_write_b128 v{vOUT2}, v[{a}:{a+3}] offset:{o*OP}", V(a, 4) + V(vOUT2)))
    return ops
def stf(o): return "" if o >= 7-args.lastplain else args.stflag
def store_ops(o):
    a = vACC + 12*o
    ops = []
    ops.append(lambda: e.ds_read(f"ds_read_b128 v[{a}:{a+3}], v{vOR1} offset:{o*OP}", V(a, 4), V(vOR1)))
    ops.append(lambda: e.ds_read(f"ds_read_b128 v[{a+4}:{a+7}], v{vOR2} offset:{o*OP}", V(a+4, 4), V(vOR2)))
    def so():
        e.salu(f"s_mul_i32 s{sT3}, s{sOSTEP}, {o}")
        e.salu(f"s_add_u32 s{sT3}, s{sT3}, s{sOROW}")
    ops += [so, NOP, NOP, NOP, NOP]
    if not args.nostore:
        ops.append(lambda: e.vmem(f"buffer_store_dwordx4 v[{a}:{a+3}], v{vOG1}, s[{SO}:{SO+3}], s{sT3} offen {stf(o)}",
                                  r=V(a, 4) + V(vOG1), wide_data=V(a, 4)))
        ops.append(NOP)
        ops.append(lambda: e.vmem(f"buffer_store_dwordx4 v[{a+4}:{a+7}], v{vOG2}, s[{SO}:{SO+3}], s{sT3} offen {stf(o)}",
                                  r=V(a+4, 4) + V(vOG2), wide_data=V(a+4, 4)))
    return ops
wq = []
def wait_writes():
    last = -1
    for i, d in enumerate(e.lgkm):
        if not d: last = i
    if last >= 0:
        n = len(e.lgkm) - 1 - last
        e.raw(f"s_waitcnt lgkmcnt({n})"); e.lgkm = e.lgkm[last+1:]

def dips_of(rp): return [d for d in (2, 1, 0) if 0 <= rp - d <= 6]
vis_row = {3: 2, 4: 2, 5: 3, 6: 3, 1: 4, 2: 4, 0: 5, 7: 5, 8: 5}
items = []
groups = {}
def add(name, rps, js, rowmajor=False):
    g = groups.setdefault(name, [])
    lst = [(rp, j) for rp in rps for j in js] if rowmajor else [(rp, j) for j in js for rp in rps]
    for rp, j in lst:
        g.append(len(items)); items.append((rp, j))
RA_, RB_, RC_, RD_ = (3, 4), (5, 6), (2, 1), (7, 8, 0)
add("2a", RA_, (0,)); add("2b", (3,), (1,)); add("2c", (4,), (1,))
add("3a", RB_, (0,)); add("3b", RB_, (1,)); add("3c", RA_, (2,))
add("4a", RB_, (2,)); add("4b", RA_, (3,))
add("5a", RB_, (3,)); add("5b", RC_, (0,))
add("6a", RC_, (1,)); add("6b", RC_, (2, 3)); add("6b", RD_, (0,)); add("6c", RD_, (1, 2, 3))
add("7a", (0, 1), (4, 5, 6)); add("7b", (0, 1), (7,))
add("8_2a", (2,), (4, 5)); add("8_2b", (2,), (6, 7)); add("8_2c", (0, 1, 2), (8,))
for r in range(3, 9): add(f"8_{r}", (r,), (4, 5, 6, 7, 8))
RING_END_IDX = groups["8_2a"][0]
assert sorted(items) == sorted((r, j) for r in range(9) for j in range(9))
fr_done = set()
PF = args.pf
fbmap = {}
def fb(n): return fbmap.get(n, vFR + 4*(n % NB))
def item_main(n):
    rp, j = items[n]
    return [conv_mfma(j, rp, dip, t, fb(n)) for dip in dips_of(rp) for t in range(3)]
def prefetch_ops(n, step, depth=None):
    ops = []
    ahead = 0
    lim = 9*(PF if depth is None else depth)
    for m in range(n, min(n + NB - 1, len(items))):
        rp, j = items[m]
        if m > n and ahead >= lim + 1: break
        if m not in fr_done:
            if vis_row[rp] > step: break
            fr_done.add(m); ops.append(frag_read(j, rp, fb(m)))
        ahead += 3*len(dips_of(rp))
    return ops
def read_op(m):
    rp, j = items[m]; fr_done.add(m); return frag_read(j, rp, fb(m))
def block_main(blk):
    lst = [(rp_ - d, t, n, d) for n in blk for rp_ in [items[n][0]] for d in dips_of(rp_) for t in range(3)]
    lst.sort(key=lambda x: (x[0], x[1]))
    return [conv_mfma(items[n][1], items[n][0], d, t, fb(n)) for (o, t, n, d) in lst]
def emit_main(main, fill, hooks):
    nm, nf = len(main), len(fill)
    fi = 0; pq = []
    for p, m in enumerate(main):
        if p in hooks:
            now, later = hooks[p]()
            while pq: pq.pop(0)()
            run(now); pq += later
        m()
        nds0 = e.nds
        if pq: pq.pop(0)()
        tgt = -(-(p + 1) * nf // nm)
        cnt = 0
        while fi < min(tgt, nf):
            f = fill[fi]
            if getattr(f, "ds", False) and e.nds > nds0 and (nf - fi) < (nm - p): break
            f(); fi += 1; cnt += 1
            if cnt >= 3: break
    while pq: pq.pop(0)()
    while fi < nf: fill[fi](); fi += 1
RING_END = [None]
def conv_seg(names, step, fill, k=None):
    k = k or args.chain
    idx = [n for nm_ in names for n in groups[nm_]]
    blocks = [idx[i:i+k] for i in range(0, len(idx), k)]
    main = []; hooks = {}
    for blk in blocks:
        for n in blk: assert vis_row[items[n][0]] <= step
        def hook(blk=blk):
            now = [read_op(n) for n in blk if n not in fr_done]
            later = []
            for m in range(blk[-1] + 1, min(blk[0] + NB, blk[-1] + 1 + args.chain, RING_END[0])):
                if m in fr_done: continue
                if vis_row[items[m][0]] > step: break
                later.append(read_op(m))
            return now, later
        hooks[len(main)] = hook
        main += block_main(blk)
    emit_main(main, fill, hooks)

e.salu(f"s_mov_b64 s[{SO}:{SO+1}], s[12:13]")
e.salu(f"s_mov_b32 s{SO+2}, {FINE_B}")
e.salu(f"s_mov_b32 s{SO+3}, 0x20000")
if args.cpos == 1: code_touch()
stamp("E:setup done"); vm_wait("WL"); stamp("B0 wait done"); e.barrier()
run(mix(pull_ops(-1), g0[3:]))
pass
vm_wait("PA"); e.wait_lgkm0(); pass; e.barrier()
run(lat_reads(0))
run(x_ops(1))
run(lat_unpack(0))
g1 = group_ops(1)
def lateral_first(n, fill_a, fill_b, stores=True):
    lm = lat_mfma(n); ls = lat_store(n)
    idx = [i for i, t in enumerate(vq) if t == f"X{n}"]
    for s_ in range(3):
        e.wait_vm(len(vq) - 1 - idx[s_])
        if s_ == 0: stamp(f"X{n} landed")
        if s_ < 2: seg(lm[6*s_:6*s_+6], (fill_a, fill_b)[s_])
    run(lm[12:])
    if stores: run(ls)
lateral_first(0, [], [], stores=False)
run(g1[:3])
run(lat_store(0))
vm_wait("G0"); e.wait_lgkm0(); stamp("S1 end"); e.barrier()
RING_END[0] = RING_END_IDX
p0 = pull_ops(0); p1 = pull_ops(1); u1 = lat_unpack(1)
run(prefetch_ops(groups["2a"][0], 2, 1)); run(p0[:6])
m2 = [conv_mfma(0, items[n][0], d, t, fb(n)) for d in (2, 1, 0) for n in groups["2a"] for t in range(3)]
seg(m2[:6], p0[6:])
seg(m2[6:], mix(lat_reads(1) + prefetch_ops(groups["2b"][0], 2, 1) + p1[:12], g1[3:6]))
seg(item_main(groups["2b"][0])[:6], mix(p1[12:], g1[6:]) + u1[:4])
conv_seg_rest = item_main(groups["2b"][0])[6:]
seg(conv_seg_rest, u1[4:12])
run(u1[12:] + p_ops(1, "PC") + x_ops(2))
lateral_first(1, [], [], stores=False)
conv_seg(["2c"], 2, lat_store(1))
vm_wait("G1"); e.wait_lgkm0(); stamp("S2 end"); e.barrier()
e.refill = 7
g2 = group_ops(2); g3 = group_ops(3)
conv_seg(["3a", "3b"], 3, mix(pull_ops(2) + pull_ops(3)[:8], p_ops(4, "PD") + p_ops(0, "PD") + x_ops(3)))
conv_seg(["3c"], 3, pull_ops(3)[8:] + [NOP]*4)
vm_wait("X2"); e.wait_for(pull_last(3)); stamp("S3 end"); e.barrier()
conv_seg(["4a"], 3, lat_reads(2) + lat_unpack(2))
seg(lat_chain(2), g2[:3])
conv_seg(["4b"], 3, lat_store(2) + g2[3:6])
vm_wait("X3"); e.wait_lgkm0(); stamp("S4 end"); e.barrier()
conv_seg(["5a"], 4, lat_reads(3) + mix(lat_unpack(3), g2[6:]))
seg(lat_chain(3), g3[:4])
conv_seg(["5b"], 4, lat_store(3) + g3[4:6])
conv_seg(["6a"], 4, g3[6:])
vm_wait("G2"); e.wait_lgkm0(); stamp("S5 end"); e.barrier()
def g4blk(k):
    def f():
        with Region(f"s_cmp_eq_u32 s{sG}, 0"): run(group_ops(4)[3*k:3*k+3])
    return f
p4 = pull_ops(4, order=(0, 1, 2))
conv_seg(["6b"], 5, pull_ops(5) + p4[:12])
vm_wait("G3"); e.wait_for(pull_last(5)); stamp("S6 end"); e.barrier()
def g4one(k):
    def f():
        with Region(f"s_cmp_eq_u32 s{sG}, 0"): group_ops(4)[k]()
    return f
conv_seg(["6c"], 5, mix(p4[12:] + pull_ops(6), [g4blk(0), g4blk(1), g4blk(2), NOP]))
conv_seg(["7a"], 5, pull_ops(7) + [NOP]*3)
POOL = [vFR + 4*k for k in range(8)] + [vLA + 4*k for k in range(6)]
R2a = groups["8_2a"] + groups["8_2b"]; R2c = groups["8_2c"]
for k, n in enumerate(R2a): fbmap[n] = POOL[8 + k]
for k, n in enumerate(R2c): fbmap[n] = [POOL[12], POOL[13], POOL[7]][k]
for r in range(3, 9):
    for k, n in enumerate(groups[f"8_{r}"]): fbmap[n] = POOL[(0 if r % 2 else 8) + k]
def dsops(ops):
    for f in ops: f.ds = True
    return ops
conv_seg(["7b"], 5, dsops([read_op(n) for n in R2a]))
e.wait_vm(0); e.wait_for(pull_last(7)); stamp("S7 end"); e.barrier()
emit_main(block_main(R2a), pull_ops(8) + dsops([read_op(n) for n in R2c]) + [NOP]*6, {})
emit_main(block_main(R2c), dsops([read_op(n) for n in groups["8_3"]]) + [NOP]*8, {})
stamp("row2 done")
for r in range(3, 8):
    m = block_main(groups[f"8_{r}"])
    nxt = dsops([read_op(n) for n in groups[f"8_{r+1}"]])
    if r == 3:
        emit_main(m[:15], epilogue_ops(0), {})
        emit_main(m[15:30], epilogue_ops(1) + [NOP]*4, {})
        wait_writes(); e.barrier()
        s0 = store_ops(0); s1 = store_ops(1)
        emit_main(m[30:], nxt + s0[:3] + s1[:2] + [f for f in s0[3:] if f is not NOP], {})
        carry = [f for f in s1[2:] if f is not NOP]
    elif r < 7:
        emit_main(m[:15], carry + nxt, {}); carry = []
        emit_main(m[15:30], epilogue_ops(r - 2) + [NOP]*4, {})
        wait_writes(); e.barrier()
        emit_main(m[30:], store_ops(r - 2), {})
    else:
        emit_main(m[:15], nxt, {})
        emit_main(m[15:], epilogue_ops(5) + [NOP]*4, {})
        wait_writes(); e.barrier()
m = block_main(groups["8_8"]); ep6 = epilogue_ops(6)
emit_main(m[:12], store_ops(5), {})
emit_main(m[12:], ep6[:2], {})
run(ep6[2:4] + ep6[6:8] + ep6[9:10] + ep6[4:6] + ep6[8:9])
wait_writes(); e.barrier()
run([f for f in store_ops(6) if f is not NOP])
stamp("end")
if args.stamps:
    e.raw("s_waitcnt vmcnt(0)")
    stamp("stores done"); stamp("end", rt=True)
    e.raw("s_waitcnt lgkmcnt(0)")
    e.salu(f"s_lshl_b32 s{sT0}, s{sWGID}, 2")
    e.salu(f"s_add_u32 s{sT0}, s{sT0}, s{sW}")
    e.salu(f"s_lshl_b32 s{sT0}, s{sT0}, 8")
    e.salu("s_mov_b32 s20, s16"); e.salu("s_mov_b32 s21, s17"); e.salu("s_mov_b32 s22, 0x100000"); e.salu("s_mov_b32 s23, 0x20000")
    e.valu("v_mov_b32 v24, 0", w=V(24))
    e.raw("s_mov_b64 exec, 1")
    for k in range(nstamp[0]):
        e.valu(f"v_mov_b32 v26, s{sSTAMP+2*k}", w=V(26))
        e.valu(f"v_mov_b32 v27, s{sSTAMP+2*k+1}", w=V(27))
        e.vmem(f"buffer_store_dwordx2 v[26:27], v24, s[20:23], s{sT0} offen offset:{8*k}", r=V(24)+V(26, 2))
        e.raw("s_nop 1")
e.label("L_end")
e.raw("s_endpgm")

out.append(e.text())
out.append('.section .rodata,"a"')
out.append(".p2align 6")
out.append(f".amdhsa_kernel {args.name}")
out.append("  .amdhsa_next_free_vgpr 512")
out.append("  .amdhsa_next_free_sgpr 102")
out.append("  .amdhsa_accum_offset 256")
out.append("  .amdhsa_group_segment_fixed_size 0")
out.append("  .amdhsa_kernarg_size 56")
out.append("  .amdhsa_user_sgpr_count 2")
out.append("  .amdhsa_user_sgpr_kernarg_segment_ptr 1")
out.append("  .amdhsa_system_sgpr_workgroup_id_x 1")
out.append(".end_amdhsa_kernel")
print("\n".join(out))
nm = sum(1 for l in e.lines if "v_mfma" in l)
sys.stderr.write(f"nops={e.nops} waits={e.waits} stamps={nstamp[0]} lines={len(e.lines)} mfma={nm} vq={len(vq)} lds={LDS}\n")
```
